```python
import torch

def _softmax(x, axis=-1):
    return torch.softmax(x, dim=axis)
def _gelu(x):
    return torch.nn.functional.gelu(x, approximate="tanh")
def _silu(x):
    return torch.nn.functional.silu(x)
def _sigmoid(x):
    return torch.sigmoid(x)
def _layernorm(x, axis=-1, eps=1e-5):
    m = x.mean(dim=axis, keepdim=True)
    v = x.var(dim=axis, keepdim=True, unbiased=False)
    return (x - m) / torch.sqrt(v + eps)
def _scatter_add(tgt, idx, src, axis=0):
    return tgt.clone().index_add_(axis, idx, src)
def _segment_sum(src, seg, n):
    out = torch.zeros((n,) + src.shape[1:], dtype=src.dtype)
    return out.index_add_(0, seg, src)
def _pad(x, pw):
    flat = tuple(v for pair in reversed(pw) for v in pair)
    return torch.nn.functional.pad(x, flat)

kernel_name = 'recurrent_scan__mha_block_cached__dense_activation_silu__prompt'

def setup_inputs():

    _w = (lambda a: (lambda t: t.to(torch.bfloat16) if t.is_floating_point() else t)(torch.as_tensor(a)))
    def _A_setup():
        B, Sq, D = 1, 2048, 512
        H, Sk, Dh = 32, 2048, 128
        return {
            "x": _w((lambda *s: torch.randn(*s, dtype=torch.bfloat16) * 0.05)(B, Sq, D)),
            "k_cache": _w((lambda *s: torch.randn(*s, dtype=torch.bfloat16) * 3.2)(B, H, Sk, Dh)),
            "v_cache": _w((lambda *s: torch.randn(*s, dtype=torch.bfloat16) * 3.2)(B, H, Sk, Dh)),
            "wq": _w((lambda *s: torch.randn(*s, dtype=torch.bfloat16) * 3.2)(D, H * Dh) * (D ** -0.5)),
            "wo": _w((lambda *s: torch.randn(*s, dtype=torch.bfloat16) * 3.2)(H * Dh, D) * ((H * Dh) ** -0.5)),
        }
    _A_in = _A_setup()

    def _B_setup():
        B, S, D, F = 1, 2048, 512, 1792
        return {
            "x": _w((lambda *s: torch.randn(*s, dtype=torch.bfloat16) * 0.05)(B, S, D)),
            "w1": _w((lambda *s: torch.randn(*s, dtype=torch.bfloat16) * 3.2)(D, F) * (D ** -0.5)),
            "w2": _w((lambda *s: torch.randn(*s, dtype=torch.bfloat16) * 0.4)(F, D) * (F ** -0.5)),
        }
    _B_in = _B_setup()

    return {
        "A_x": _A_in["x"],
        "A_k_cache": _A_in["k_cache"],
        "A_v_cache": _A_in["v_cache"],
        "A_wq": _A_in["wq"],
        "A_wo": _A_in["wo"],
        "B_x": _B_in["x"],
        "B_w1": _B_in["w1"],
        "B_w2": _B_in["w2"],
    }

def reference(A_x, A_k_cache, A_v_cache, A_wq, A_wo, B_x, B_w1, B_w2):
    def _A_ref(x, k_cache, v_cache, wq, wo):
        B, Sq, D = x.shape
        H, Dh = 32, 128
        q = (lambda x, *d: x.permute(*d))((x @ wq).reshape(B, Sq, H, Dh), 0, 2, 1, 3)
        scores = torch.einsum("bhqd,bhkd->bhqk", q, k_cache) * (Dh ** -0.5)
        p = _softmax(scores, axis=-1)
        o = torch.einsum("bhqk,bhkd->bhqd", p, v_cache)
        return (lambda x, *d: x.permute(*d))(o, 0, 2, 1, 3).reshape(B, Sq, H * Dh) @ wo

    def _B_ref(x, w1, w2):
        h = torch.einsum("bsd,df->bsf", x, w1)
        h = _silu(h)
        out = torch.einsum("bsf,fd->bsd", h, w2)
        return out

    x = A_x
    xn = _layernorm(x, axis=-1)
    s = _A_ref(xn, A_k_cache, A_v_cache, A_wq, A_wo)
    g = _silu(_B_ref(xn, B_w1, B_w2))
    return x + s * g
```

```python
import re

def v(i, n=1):
    return f"v{i}" if n == 1 else f"v[{i}:{i+n-1}]"
def a(i, n=1):
    return f"a{i}" if n == 1 else f"a[{i}:{i+n-1}]"
def s(i, n=1):
    return f"s{i}" if n == 1 else f"s[{i}:{i+n-1}]"

class Asm:
    def __init__(self):
        self.L = []
    def __call__(self, txt):
        for ln in txt.split("\n"):
            ln = ln.strip()
            if ln:
                self.L.append(ln if ln.endswith(":") else "    " + ln)
    def label(self, n):
        self.L.append(n + ":")
    def c(self, txt):
        self.L.append("    ; " + txt)
    def raw(self, txt):
        self.L.append(txt)
    def nop(self, n):
        while n > 0:
            k = min(n, 16)
            self(f"s_nop {k-1}")
            n -= k
    def text(self):
        return "\n".join(self.L) + "\n"

_REG = re.compile(r"^(-|\|)?(?:abs\()?([vas])(?:(\d+)|\[(\d+):(\d+)\])\)?\|?$")
def regs_of(tok):
    tok = tok.strip()
    if tok in ("vcc",):
        return {("s", 106), ("s", 107)}
    if tok == "exec":
        return {("s", 126), ("s", 127)}
    if tok == "m0":
        return {("s", 124)}
    m = _REG.match(tok)
    if not m:
        return set()
    f = m.group(2)
    if m.group(3) is not None:
        lo = hi = int(m.group(3))
    else:
        lo, hi = int(m.group(4)), int(m.group(5))
    return {(f, i) for i in range(lo, hi + 1)}

TRANS = ("v_exp_f32", "v_log_f32", "v_rcp_f32", "v_rsq_f32", "v_sqrt_f32", "v_sin_f32", "v_cos_f32", "v_rcp_iflag_f32")

class Ins:
    __slots__ = ("mn", "ops", "dst", "src", "kind", "text", "srcC", "passes", "states", "line")

def split_ops(rest):
    ops, depth, cur = [], 0, ""
    for ch in rest + ",":
        if ch == "[":
            depth += 1
        elif ch == "]":
            depth -= 1
        if ch == "," and depth == 0:
            p = cur.split()
            if p:
                ops.append(p[0])
            cur = ""
        else:
            cur += ch
    return ops

def parse(line):
    t = line.split(";")[0].strip()
    if not t or t.endswith(":") or t.startswith("."):
        return None
    parts = t.split(None, 1)
    I = Ins()
    I.text = t
    I.mn = re.sub(r"_e(32|64)$", "", parts[0])
    I.ops = split_ops(parts[1]) if len(parts) > 1 else []
    I.dst, I.src, I.srcC, I.passes, I.states = set(), set(), set(), 0, 1
    mn, ops = I.mn, I.ops
    R = [regs_of(o) for o in ops]
    if mn == "s_nop":
        I.kind = "nop"; I.states = int(ops[0], 0) + 1
    elif mn.startswith("v_mfma"):
        I.kind = "mfma"
        I.dst = R[0]; I.src = R[1] | R[2] | R[3]; I.srcC = R[3]
        I.passes = 8 if "32x32" in mn else 4
    elif mn.startswith("v_cmp"):
        I.kind = "valu"; I.dst = R[0]; I.src = set().union(*R[1:])
        if mn.startswith("v_cmpx"):
            I.dst |= regs_of("exec")
    elif mn.startswith("v_readfirstlane") or mn.startswith("v_readlane"):
        I.kind = "valu"; I.dst = R[0]; I.src = set().union(*R[1:])
    elif mn.startswith("v_permlane") and "swap" in mn:
        I.kind = "valu"; I.dst = R[0] | R[1]; I.src = R[0] | R[1]
    elif mn.startswith("v_"):
        I.kind = "valu"; I.dst = set(R[0]); I.src = set().union(*R[1:]) if len(R) > 1 else set()
        if mn in ("v_add_co_u32", "v_sub_co_u32", "v_addc_co_u32", "v_subb_co_u32"):
            I.dst |= R[1]
        if mn in ("v_fmac_f32", "v_dot2c_f32_bf16", "v_pk_fmac_f16") or mn.startswith("v_writelane"):
            I.src |= R[0]
        if mn == "v_cndmask_b32" and len(ops) == 3:
            I.src |= regs_of("vcc")
    elif mn.startswith("ds_read") or mn.startswith("ds_bpermute") or mn.startswith("ds_swizzle") or mn.startswith("ds_permute"):
        I.kind = "ds"; I.dst = R[0]; I.src = set().union(*R[1:])
    elif mn.startswith("ds_"):
        I.kind = "ds"; I.src = set().union(*R)
    elif mn.startswith("buffer_load") or mn.startswith("global_load"):
        I.kind = "vmem"
        if " lds" in t or "_lds_" in mn:
            I.src = set().union(*R) | regs_of("m0"); I.kind = "dma"
        else:
            I.dst = R[0]; I.src = set().union(*R[1:])
    elif mn.startswith("buffer_store") or mn.startswith("global_store"):
        I.kind = "vstore"; I.src = set().union(*R)
    elif mn.startswith("buffer_atomic") or mn.startswith("global_atomic"):
        I.kind = "vmem"; I.src = set().union(*R)
        if " sc0" in t:
            I.dst = R[0]
    elif mn.startswith("buffer_") :
        I.kind = "vmem"
    elif mn.startswith("s_"):
        I.kind = "salu"
        if mn.startswith("s_cmp") or mn.startswith("s_cbranch") or mn in ("s_branch", "s_waitcnt", "s_barrier", "s_endpgm", "s_setprio", "s_sleep", "s_bitcmp1_b32", "s_bitcmp0_b32"):
            I.src = set().union(*R) if R else set()
        else:
            I.dst = R[0] if R else set(); I.src = set().union(*R[1:]) if len(R) > 1 else set()
            if "saveexec" in mn:
                I.dst |= regs_of("exec")
    else:
        raise ValueError("unparsed: " + t)
    return I

def check_hazards(lines, name="", verbose=True):
    ins = []
    for n, l in enumerate(lines):
        I = parse(l)
        if I is not None:
            I.line = n
            ins.append(I)
    probs = []
    def vv(x):
        return {r for r in x if r[0] in "va"}
    def ss(x):
        return {r for r in x if r[0] == "s"}
    N = len(ins)
    for i, P in enumerate(ins):
        dist = 0
        for j in range(i + 1, min(N, i + 40)):
            C = ins[j]
            need = 0; why = ""
            if P.kind == "mfma":
                D = P.dst
                p8 = P.passes == 8
                if C.kind == "mfma":
                    if C.srcC & D:
                        if not (C.srcC == D and C.passes == P.passes):
                            need, why = (10 if p8 else 6), "mfma D->mfma C overlap"
                    ab = (regs_of(C.ops[1]) | regs_of(C.ops[2]))
                    if ab & D:
                        need, why = max(need, 12 if p8 else 8), "mfma D->mfma A/B"
                    if (C.dst & D) and not (C.srcC == D):
                        need, why = max(need, 10 if p8 else 6), "mfma D->mfma D WAW"
                elif C.kind in ("valu",):
                    if (C.src | C.dst) & D:
                        need, why = (12 if p8 else 8), "mfma D->valu"
                    if C.dst & P.srcC:
                        need, why = max(need, 7 if p8 else 3), "mfma srcC ->valu write WAR"
                elif C.kind in ("ds", "vmem", "vstore", "dma"):
                    if (C.src | C.dst) & D:
                        need, why = (12 if p8 else 8), "mfma D->mem"
                    if C.dst & P.srcC:
                        need, why = max(need, 7 if p8 else 3), "mfma srcC -> load write WAR"
            elif P.kind == "valu":
                if C.kind == "mfma" and (C.src & vv(P.dst)):
                    need, why = 2, "valu->mfma"
                if C.kind == "valu":
                    if P.mn in TRANS and C.mn not in TRANS and (C.src & vv(P.dst)):
                        need, why = 1, "trans->valu"
                    if P.mn in TRANS and C.mn in TRANS and (C.src & vv(P.dst)):
                        need, why = 1, "trans->trans(conservative)"
                    if (C.mn.startswith("v_readfirstlane") or C.mn.startswith("v_readlane")) and (C.src & vv(P.dst)):
                        need, why = max(need, 1), "valu->readlane"
                    if C.mn.startswith("v_permlane") and (C.src & vv(P.dst)):
                        need, why = max(need, 2), "valu->permlane"
                    if "dpp" in C.text and (C.src & vv(P.dst)):
                        need, why = max(need, 2), "valu->dpp"
                    if C.src & ss(P.dst):
                        need, why = max(need, 2), "valu sgpr->valu"
                        if C.mn.startswith("v_readlane") or C.mn.startswith("v_writelane"):
                            need = max(need, 4)
                if C.kind in ("vmem", "vstore", "dma") and (C.src & ss(P.dst)):
                    need, why = 5, "valu sgpr->vmem"
                if C.kind == "salu" and (C.src & ss(P.dst)) and not C.mn.startswith("s_cbranch"):
                    need, why = max(need, 1), "valu sgpr->salu(conservative)"
                if P.mn.startswith("v_cmpx") and C.kind == "mfma":
                    need, why = max(need, 4), "exec->mfma"
            elif P.kind == "salu":
                if ("s", 124) in P.dst and C.kind == "dma":
                    need, why = 1, "m0->dma"
            elif P.kind == "vstore":
                big = ("x4" in P.mn or "x3" in P.mn)
                if big and C.kind == "valu":
                    data = regs_of(P.ops[0]) if P.mn.startswith("buffer") else regs_of(P.ops[1])
                    if C.dst & data:
                        need, why = 2, "store data WAR"
                if big and C.kind in ("ds", "vmem", "mfma"):
                    data = regs_of(P.ops[0]) if P.mn.startswith("buffer") else regs_of(P.ops[1])
                    if C.dst & data:
                        need, why = 1, "store data WAR(load)"
            if need > dist:
                probs.append(f"{name}: line {P.line}: [{P.text}] -> line {C.line}: [{C.text}] need {need} have {dist} ({why})")
            dist += C.states
            if dist >= 20:
                break
    if verbose:
        for p in probs[:40]:
            print("HAZARD", p)
    return probs
```

```python
from asmlib import *

NAME = "recurrent_scan__mha_block_cached__dense_activation_silu__prompt"
XN_OFF, H_OFF, O_OFF = 0, 0x200000, 0xA00000
PROF_OFF = 0x4000000
LOG2E = 1.4426950408889634

import struct
def f2u(x):
    return struct.unpack("<I", struct.pack("<f", x))[0]
def fhex(x):
    return "0x%08x" % f2u(x)

HEADER = """; Kernarg layout for this problem (88 bytes, ptrs only, base s[0:1]):
"""

def kernel_desc(label, vgpr, accum, sgpr=102):
    return f""".amdhsa_kernel {label}
  .amdhsa_next_free_vgpr {vgpr}
  .amdhsa_next_free_sgpr {sgpr}
  .amdhsa_accum_offset {accum}
  .amdhsa_group_segment_fixed_size 0
  .amdhsa_kernarg_size 88
  .amdhsa_user_sgpr_count 2
  .amdhsa_user_sgpr_kernarg_segment_ptr 1
  .amdhsa_system_sgpr_workgroup_id_x 1
.end_amdhsa_kernel
"""

def kernel_head(A, label):
    A.raw(f".globl {label}")
    A.raw(".p2align 8")
    A.raw(f".type {label},@function")
    A.label(label)

def assemble_file(kernels):
    out = HEADER
    for (label, grid, block, lds, body, vg, ac) in kernels:
        out += f"; @launch kernel={label} grid=({grid},1,1) block=({block},1,1) lds={lds}\n"
    out += '.amdgcn_target "amdgcn-amd-amdhsa--gfx950"\n.text\n'
    seen = set()
    for (label, grid, block, lds, body, vg, ac) in kernels:
        if label in seen: continue
        seen.add(label)
        out += body
    out += '.section .rodata,"a"\n'
    seen = set()
    for (label, grid, block, lds, body, vg, ac) in kernels:
        if label in seen: continue
        seen.add(label)
        out += ".p2align 6\n" + kernel_desc(label, vg, ac)
    return out

class VM:
    def __init__(self, A):
        self.A = A; self.ops = []; self.retired = 0
    def issue(self, txt, tag):
        self.A(txt); self.ops.append(tag)
    def count_after(self, tags):
        if isinstance(tags, str): tags = [tags]
        last = -1
        for i, t in enumerate(self.ops):
            if t in tags: last = i
        assert last >= 0, tags
        return len(self.ops) - 1 - last
    def wait(self, tags, emit=True):
        n = self.count_after(tags)
        done = len(self.ops) - n
        if done <= self.retired:
            return None
        self.retired = done
        n = min(n, 63)
        if emit: self.A(f"s_waitcnt vmcnt({n})")
        return n
    def outstanding(self):
        return len(self.ops) - self.retired
```

```python
from gen_common import *

def gen_k1():
    A = Asm()
    L = "ln_kernel"
    kernel_head(A, L)
    A("""
    s_cmp_ge_u32 s2, 256
    s_cbranch_scc1 ln_done
    s_load_dwordx2 s[4:5], s[0:1], 0
    s_load_dwordx2 s[6:7], s[0:1], 80
    v_and_b32 v1, 63, v0
    v_lshrrev_b32 v2, 6, v0          ; wave
    v_lshrrev_b32 v3, 5, v1
    v_lshl_add_u32 v3, v2, 1, v3     ; + 2*wave
    s_lshl_b32 s3, s2, 3
    v_add_u32 v3, s3, v3             ; row
    v_and_b32 v2, 31, v1             ; t = k-step
    v_lshlrev_b32 v28, 10, v3        ; row*1024
    v_lshl_add_u32 v28, v2, 5, v28   ; + t*32
    s_waitcnt lgkmcnt(0)
    global_load_dwordx4 v[4:7], v28, s[4:5]
    global_load_dwordx4 v[8:11], v28, s[4:5] offset:16
    v_lshrrev_b32 v29, 5, v3         ; qtile
    v_lshlrev_b32 v29, 15, v29       ; *32768
    v_lshl_add_u32 v29, v2, 10, v29  ; + t*1024
    v_and_b32 v3, 31, v3
    v_lshl_add_u32 v29, v3, 4, v29   ; + (row%32)*16
    s_waitcnt vmcnt(0)
    """)
    for i in range(8):
        A(f"v_lshlrev_b32 v{12+2*i}, 16, v{4+i}")
        A(f"v_and_b32 v{13+2*i}, 0xffff0000, v{4+i}")
    def reduce32(r, t):
        for sh in (8, 4, 2, 1):
            A.nop(2)
            A(f"v_add_f32_dpp v{r}, v{r}, v{r} row_ror:{sh} row_mask:0xf bank_mask:0xf")
        A(f"v_mov_b32 v{t}, v{r}")
        A.nop(2)
        A(f"v_permlane16_swap_b32 v{r}, v{t}")
        A.nop(2)
        A(f"v_add_f32 v{r}, v{r}, v{t}")
    A("v_add_f32 v30, v12, v13")
    A("v_add_f32 v31, v14, v15")
    for i in range(2, 8):
        A(f"v_add_f32 v{30 + (i & 1)}, v{30 + (i & 1)}, v{12+2*i}")
        A(f"v_add_f32 v{30 + (i & 1)}, v{30 + (i & 1)}, v{13+2*i}")
    A("v_add_f32 v30, v30, v31")
    reduce32(30, 31)
    A(f"v_mul_f32 v30, {fhex(1.0/512)}, v30")
    for i in range(16):
        A(f"v_sub_f32 v{12+i}, v{12+i}, v30")
    A("v_mul_f32 v30, v12, v12")
    A("v_mul_f32 v31, v13, v13")
    for i in range(2, 16):
        A(f"v_fmac_f32 v{30 + (i & 1)}, v{12+i}, v{12+i}")
    A("v_add_f32 v30, v30, v31")
    reduce32(30, 31)
    A(f"v_mov_b32 v31, {fhex(1e-5)}")
    A(f"v_fmac_f32 v31, {fhex(1.0/512)}, v30")
    A("v_rsq_f32 v31, v31")
    A.nop(1)
    for i in range(16):
        A(f"v_mul_f32 v{12+i}, v{12+i}, v31")
    order = [0, 1, 4, 5, 2, 3, 6, 7]
    for j, d in enumerate(order):
        A(f"v_cvt_pk_bf16_f32 v{4+j}, v{12+2*d}, v{13+2*d}")
    A(f"""
    s_add_u32 s6, s6, {XN_OFF}
    s_addc_u32 s7, s7, 0
    global_store_dwordx4 v29, v[4:7], s[6:7]
    global_store_dwordx4 v29, v[8:11], s[6:7] offset:512
    """)
    A.label("ln_done")
    A("s_endpgm")
    check_hazards(A.L, "k1")
    return (L, 256, 256, 0, A.text(), 32, 32)
```

```python
from gen_common import *

VK = 2
VV = 10
VKD = 14
VVD = 18
VL16 = 19
LA, LB = 20, 22
QF = 32
S0 = 96
NEGM = 160
P0 = 192
WR1, WRQ = 224, 226
WD1, WDQ = 228, 229
WF = 232
AO = 0
AK = 128
AV = 144
SK, SV, SWQ, SXN, SO, SW1, SH = 4, 8, 12, 16, 20, 24, 28
S_HEAD, S_QB, S_W, S_W4K, S_W2K, S_KOFF, S_VOFF, S_CNT, S_T0, S_T1, S_MODE = 32, 33, 34, 35, 36, 37, 38, 39, 40, 41, 42
S_T2 = 43
S_SCALE, S_NLOG2E = 46, 47
LDS_V = 65536
LDS_X = 131072

class DS:
    def __init__(self, A):
        self.A = A; self.ops = []; self.retired = 0
    def issue(self, txt, tag):
        self.A(txt); self.ops.append(tag)
    def wait(self, tag):
        last = -1
        for i, t in enumerate(self.ops):
            if t == tag: last = i
        assert last >= 0, tag
        n = len(self.ops) - 1 - last
        done = last + 1
        if done <= self.retired: return None
        self.retired = done
        assert n <= 15
        return f"s_waitcnt lgkmcnt({n})"
    def pending(self):
        return self.ops[self.retired:]

def srd(A, s0, lo, hi, off_lo_expr=None, nrec=None):
    pass

def mfma(d, a_, b_, c_):
    return f"v_mfma_f32_32x32x16_bf16 {d}, {a_}, {b_}, {c_}"

def gen_k2(opt=None):
    opt = opt or {}
    A = Asm()
    L = "attn_kernel"
    kernel_head(A, L)
    ds = DS(A)
    vm = VM(A)
    prof = opt.get("prof", 0)
    nstamp = [0]
    def stamp(real=False):
        if not prof: return
        i = nstamp[0]; nstamp[0] += 1
        A("s_memtime s[58:59]")
        A("s_memrealtime s[60:61]")
        A("s_waitcnt lgkmcnt(0)")
        A(f"s_mov_b32 s{64+2*i}, s58")
        A(f"s_mov_b32 s{65+2*i}, s60")
    A(f"""
    s_cmp_ge_u32 s2, 256
    s_cbranch_scc1 attn_done
    """)
    stamp()
    A(f"""
    s_load_dwordx4 s[48:51], s[0:1], 8      ; K, V
    s_load_dwordx2 s[52:53], s[0:1], 24     ; Wq
    s_load_dwordx2 s[54:55], s[0:1], 48     ; W1
    s_load_dwordx2 s[56:57], s[0:1], 80     ; ws
    v_lshrrev_b32 v1, 6, v0
    v_and_b32 v0, 63, v0
    s_and_b32 s3, s2, 7
    s_lshr_b32 s{S_T0}, s2, 3               ; i = 0..31
    v_readfirstlane_b32 s{S_W}, v1
    s_lshr_b32 s{S_T1}, s{S_T0}, 3          ; i/8 = 0..3
    s_lshl_b32 s{S_T1}, s{S_T1}, 3
    s_add_u32 s{S_HEAD}, s{S_T1}, s3        ; head = x + 8*(i/8)
    s_and_b32 s{S_QB}, s{S_T0}, 7           ; q block
    s_lshl_b32 s{S_W4K}, s{S_W}, 12
    s_lshl_b32 s{S_W2K}, s{S_W}, 11
    s_mov_b32 s{S_SCALE}, {fhex(LOG2E * 128 ** -0.5)}
    s_mov_b32 s{S_NLOG2E}, {fhex(-LOG2E)}
    s_mov_b32 s{S_MODE}, 0
    """)
    A(f"""
    v_lshlrev_b32 v{VL16}, 4, v0            ; lane*16
    v_lshrrev_b32 v24, 5, v0                ; hi
    v_and_b32 v25, 15, v0                   ; l%16
    v_lshrrev_b32 v26, 4, v0                ; g = l/16
    v_lshrrev_b32 v27, 2, v25               ; r4
    v_and_b32 v28, 3, v0                    ; c
    v_and_b32 v29, 1, v26                   ; g2
    v_and_b32 v30, 31, v0
    v_lshlrev_b32 v30, 8, v30
    v_xor_b32 v31, v24, v25
    v_lshl_add_u32 v{VK}, v31, 4, v30
    """)
    for t in range(1, 8):
        A(f"v_xor_b32 v{VK+t}, {t << 5}, v{VK}")
    A(f"""
    v_lshl_add_u32 v30, v24, 2, v27         ; 4hi + r4
    v_lshlrev_b32 v31, 8, v30
    v_lshl_add_u32 v31, v29, 5, v31
    v_lshl_add_u32 v31, v28, 3, v31
    v_add_u32 v31, {LDS_V}, v31
    """)
    for dt in range(4):
        A(f"v_xor_b32 v1, {dt}, v27")
        A(f"v_lshl_add_u32 v{VV+dt}, v1, 6, v31")
    A(f"""
    v_lshlrev_b32 v31, 8, v26
    v_add_u32 v31, s{S_W4K}, v31
    """)
    for i in range(4):
        A(f"v_add_u32 v1, {4*i}, v26")
        A(f"v_xor_b32 v1, v1, v25")
        A(f"v_lshl_add_u32 v{VKD+i}, v1, 4, v31")
    A(f"""
    v_lshlrev_b32 v1, 2, v26
    v_xor_b32 v1, v1, v25
    v_lshl_add_u32 v{VVD}, v1, 4, v31
    """)
    A(f"""
    v_lshlrev_b32 v31, 7, v30
    v_lshl_add_u32 v31, v29, 5, v31
    v_lshrrev_b32 v1, 1, v27                ; r4>>1
    v_lshl_add_u32 v21, v1, 6, v31          ; ct=0
    v_xor_b32 v1, 1, v1
    v_lshl_add_u32 v22, v1, 6, v31          ; ct=1
    v_lshlrev_b32 v23, 3, v28               ; c*8
    v_add_u32 v{WR1}, v21, v23
    v_add_u32 v{WR1+1}, v22, v23
    v_add_u32 v{WR1}, {LDS_V}, v{WR1}
    v_add_u32 v{WR1+1}, {LDS_V}, v{WR1+1}
    v_and_b32 v1, 1, v28
    v_lshlrev_b32 v1, 1, v1
    v_lshrrev_b32 v23, 1, v28
    v_or_b32 v1, v1, v23                    ; sigma(c)
    v_lshlrev_b32 v23, 3, v1
    v_add_u32 v{WRQ}, v21, v23
    v_add_u32 v{WRQ+1}, v22, v23
    ; W dma voffsets: (16w + l/8)*stride + ((l%8) ^ (((l>>4)&1)<<2))*16
    v_lshrrev_b32 v1, 3, v0
    s_lshl_b32 s3, s{S_W}, 4
    v_add_u32 v1, s3, v1                    ; row
    v_and_b32 v21, 7, v0
    v_lshlrev_b32 v22, 2, v29               ; ((l>>4)&1)<<2
    v_xor_b32 v21, v21, v22
    v_lshlrev_b32 v21, 4, v21
    v_mul_u32_u24 v22, 3584, v1
    v_add_u32 v{WD1}, v22, v21
    v_lshl_add_u32 v{WDQ}, v1, 13, v21
    s_waitcnt lgkmcnt(0)
    """)
    A(f"""
    s_lshl_b32 s3, s{S_HEAD}, 19
    s_add_u32 s{SK}, s48, s3
    s_addc_u32 s{SK+1}, s49, 0
    s_mov_b32 s{SK+2}, 0x80000
    s_mov_b32 s{SK+3}, 0x20000
    s_add_u32 s{SV}, s50, s3
    s_addc_u32 s{SV+1}, s51, 0
    s_mov_b32 s{SV+2}, 0x80000
    s_mov_b32 s{SV+3}, 0x20000
    s_lshl_b32 s3, s{S_HEAD}, 8
    s_add_u32 s{SWQ}, s52, s3
    s_addc_u32 s{SWQ+1}, s53, 0
    s_sub_u32 s{SWQ+2}, {512*8192}, s3
    s_mov_b32 s{SWQ+3}, 0x20000
    s_min_u32 s3, s{S_HEAD}, 27
    s_lshl_b32 s3, s3, 7
    s_add_u32 s{SW1}, s54, s3
    s_addc_u32 s{SW1+1}, s55, 0
    s_sub_u32 s{SW1+2}, {512*3584}, s3
    s_mov_b32 s{SW1+3}, 0x20000
    s_lshl_b32 s{S_T0}, s{S_QB}, 3
    s_lshl_b32 s{S_T1}, s{S_W}, 1
    s_add_u32 s{S_T0}, s{S_T0}, s{S_T1}
    s_lshl_b32 s3, s{S_T0}, 15
    s_add_u32 s3, s3, {XN_OFF}
    s_add_u32 s{SXN}, s56, s3
    s_addc_u32 s{SXN+1}, s57, 0
    s_mov_b32 s{SXN+2}, 0x10000
    s_mov_b32 s{SXN+3}, 0x20000
    s_lshl_b32 s3, s{S_T0}, 18
    s_lshl_b32 s{S_T1}, s{S_HEAD}, 13
    s_add_u32 s3, s3, s{S_T1}
    s_add_u32 s3, s3, {O_OFF}
    s_add_u32 s{SO}, s56, s3
    s_addc_u32 s{SO+1}, s57, 0
    s_mov_b32 s{SO+2}, {262144 + 8192}
    s_mov_b32 s{SO+3}, 0x20000
    s_mul_i32 s3, s{S_T0}, 114688
    s_lshl_b32 s{S_T1}, s{S_HEAD}, 12
    s_add_u32 s3, s3, s{S_T1}
    s_add_u32 s3, s3, {H_OFF}
    s_add_u32 s{SH}, s56, s3
    s_addc_u32 s{SH+1}, s57, 0
    s_cmp_lt_u32 s{S_HEAD}, 28
    s_cselect_b32 s{SH+2}, {114688 + 4096}, 0
    s_mov_b32 s{SH+3}, 0x20000
    """)
    def w_dma(kind, st):
        if kind == "w1":
            lds = LDS_V + st * 8192; stride = 3584; base = st * 64 * stride; sr = SW1; vo = WD1
        elif kind == "qlo":
            lds = st * 8192; stride = 8192; base = st * 64 * stride; sr = SWQ; vo = WDQ
        else:
            lds = (LDS_X + st * 8192) if st < 4 else (98304 + (st - 4) * 8192)
            stride = 8192; base = st * 64 * stride + 128; sr = SWQ; vo = WDQ
        g = []
        for i in range(2):
            pre = []
            if i == 0: pre.append(f"s_add_u32 m0, s{S_W2K}, {lds}")
            pre.append(f"s_mov_b32 s{S_T0}, {base + i * (8 * stride - 1024)}")
            g.append((pre, f"buffer_load_dwordx4 v{vo}, s[{sr}:{sr+3}], s{S_T0} offen offset:{i*1024} lds", (kind, st)))
        return g
    def xn_ld(st):
        g = []
        for qt in range(2):
            for kk in range(4):
                ks = st * 4 + kk
                pre = [f"s_mov_b32 s{S_T1}, {qt * 32768 + st * 4096}"] if kk == 0 else []
                g.append((pre, f"buffer_load_dwordx4 {a(qt*128 + ks*4, 4)}, v{VL16}, s[{SXN}:{SXN+3}], s{S_T1} offen offset:{kk*1024}", ("xn", st)))
        return g
    def kv_dma(kind, stage, soff=None):
        slot = stage % 4
        g = []
        lds = slot * 16384 + (LDS_V if kind == "v" else 0)
        sr = SK if kind == "k" else SV
        for i in range(4):
            pre = []
            if i == 0:
                pre.append(f"s_add_u32 m0, s{S_W4K}, {lds}")
                if soff is None:
                    pre.append(f"s_mov_b32 s{S_T2}, {stage * 16384}")
            so = S_T2 if soff is None else soff
            vo = VKD + i if kind == "k" else VVD
            g.append((pre, f"buffer_load_dwordx4 v{vo}, s[{sr}:{sr+3}], s{so} offen offset:{i*1024} lds", (kind, stage)))
        return g
    def emit_vm(grp):
        pre, ins, tag = grp
        for p in pre: A(p)
        if pre and "m0" in pre[-1]: A.nop(1)
        vm.issue(ins, tag)

    q1 = []
    for st in range(8):
        q1 += w_dma("w1", st) + xn_ld(st)
    for st in range(8): q1 += w_dma("qlo", st)
    for st in range(4): q1 += w_dma("qhi", st)
    for _ in range(60): emit_vm(q1.pop(0))

    def wfrag(n, ct): return WF + (n % 3) * 8 + ct * 4
    def w_reads(n):
        p, ks = divmod(n, 32); st, kk = divmod(ks, 4)
        out = []
        for ct in range(2):
            if p == 0: reg = WR1 + ct; imm = st * 8192
            elif p == 1: reg = WRQ + ct; imm = st * 8192
            else:
                reg = 230 + ct if st < 4 else 24 + ct
                imm = st * 8192 if st < 4 else 32768 + (st - 4) * 8192
            for e2 in range(2):
                out.append((f"ds_read_b64_tr_b16 {v(wfrag(n, ct) + 2*e2, 2)}, v{reg} offset:{imm + (16*kk + 8*e2) * 128}", ("w", n)))
        return out
    for ct in range(2):
        A(f"v_add_u32 v{230+ct}, {LDS_X}, v{WRQ+ct}")
        A(f"v_add_u32 v{24+ct}, {LDS_V}, v{WRQ+ct}")
    ACC = [32, 96, 160]
    def acc(p, ct, qt): return ACC[p] + (ct * 2 + qt) * 16
    fill = []
    def add_silu():
        for ct in range(2):
            for qt in range(2):
                for tp in range(2):
                    base = acc(0, ct, qt) + 8 * tp
                    for j in range(4):
                        x0, x1 = base + 2*j, base + 2*j + 1
                        ta, tb = (20, 21) if j % 2 == 0 else (22, 23)
                        fill.extend([
                            (f"v_mul_f32 v{ta}, s{S_NLOG2E}, v{x0}", 4),
                            (f"v_mul_f32 v{tb}, s{S_NLOG2E}, v{x1}", 4),
                            (f"v_exp_f32 v{ta}, v{ta}", 8),
                            (f"v_exp_f32 v{tb}, v{tb}", 8),
                            (f"v_add_f32 v{ta}, 1.0, v{ta}", 4),
                            (f"v_add_f32 v{tb}, 1.0, v{tb}", 4),
                            (f"v_rcp_f32 v{ta}, v{ta}", 8),
                            (f"v_rcp_f32 v{tb}, v{tb}", 8),
                            (f"v_mul_f32 v{x0}, v{x0}, v{ta}", 4),
                            (f"v_mul_f32 v{x1}, v{x1}, v{tb}", 4),
                            (f"v_cvt_pk_bf16_f32 v{base + j}, v{x0}, v{x1}", 4),
                        ])
                    fill.append(("HSTORE", base, ct, qt, tp))
    def add_qepi(p):
        half = p - 1
        for ct in range(2):
            for qt in range(2):
                for tp in range(2):
                    base = acc(p, ct, qt) + 8 * tp
                    t = half * 4 + ct * 2 + tp
                    for j in range(4):
                        x0, x1 = base + 2*j, base + 2*j + 1
                        fill.extend([
                            (f"v_mul_f32 v{x0}, s{S_SCALE}, v{x0}", 4),
                            (f"v_mul_f32 v{x1}, s{S_SCALE}, v{x1}", 4),
                            (f"v_cvt_pk_bf16_f32 v{QF + qt*32 + t*4 + j}, v{x0}, v{x1}", 4),
                        ])
    def pop_fill(budget):
        while fill and budget > 0:
            f = fill[0]
            if f[0] == "HSTORE":
                fill.pop(0)
                _, base, ct, qt, tp = f
                A(f"s_mov_b32 s{S_T1}, {qt * 114688}")
                vm.issue(f"buffer_store_dwordx4 {v(base, 4)}, v{VL16}, s[{SH}:{SH+3}], s{S_T1} offen offset:{(2*ct + tp) * 1024}", ("h", 0))
                budget -= 12
                continue
            if f[1] > budget and budget < 16 - 0 and f[1] > budget + 2: break
            fill.pop(0)
            A(f[0]); budget -= f[1]

    syncs = {}
    for st in range(1, 8): syncs[4*st - 2] = [("w1", st), ("xn", st)]
    syncs[30] = [("qlo", 0), ("qlo", 1)]
    syncs[38] = [("qlo", 2), ("qlo", 3)]
    syncs[46] = [("qlo", 4), ("qlo", 5)]
    syncs[54] = [("qlo", 6), ("qlo", 7)]
    syncs[62] = [("qhi", 0), ("qhi", 1)]
    syncs[70] = [("qhi", 2), ("qhi", 3)]
    syncs[78] = [("qhi", 4), ("qhi", 5)]
    syncs[86] = [("qhi", 6), ("qhi", 7)]
    vq = q1
    vm.wait([("w1", 0), ("xn", 0)])
    A("s_barrier")
    stamp()
    for n in (0, 1):
        for (t, tag) in w_reads(n): ds.issue(t, tag)
    for n in range(96):
        p, ks = divmod(n, 32)
        if n in (32, 64): stamp()
        if n in syncs:
            assert not any(g[2] in syncs[n] for g in vq), (n, syncs[n])
            vm.wait(syncs[n])
            A("s_barrier")
        if n == 38:
            q2 = []
            for st in range(4, 8): q2 += w_dma("qhi", st)
            q2 += kv_dma("v", 0) + kv_dma("v", 1)
            vq = vq + q2
        if n == 70:
            assert not vq, vq
            vq = kv_dma("k", 0) + kv_dma("k", 1) + kv_dma("k", 2)
        if n == 33: add_silu()
        if n == 65: add_qepi(1)
        w = ds.wait(("w", n))
        if w: A(w)
        rd = w_reads(n + 2) if n + 2 < 96 else []
        i = 0
        for ct in range(2):
            for qt in range(2):
                d = v(acc(p, ct, qt), 16)
                A(mfma(d, v(wfrag(n, ct), 4), a(qt*128 + ks*4, 4), "0" if ks == 0 else d))
                if rd:
                    t, tag = rd.pop(0); ds.issue(t, tag)
                budget = 16
                if vq and vm.outstanding() < 62 and (p == 0 or i % 2 == 0):
                    emit_vm(vq.pop(0)); budget -= 8
                pop_fill(budget)
                i += 1
    assert not vq
    assert [t[0] for t in vm.ops[-12:]] == ["k"] * 12 and not any(f[0] == "HSTORE" for f in fill)
    while fill: pop_fill(1000)
    A.nop(12)
    add_qepi(2)
    while fill: pop_fill(1000)

    def kread(slot, sub, t, ring):
        return (f"ds_read_b128 {a(AK + 4*ring, 4)}, v{VK+t} offset:{slot*16384 + sub*8192}")
    def vread(slot, sub, g, ring):
        u, dt = divmod(g, 4)
        o = slot*16384 + sub*8192 + u*4096
        return [f"ds_read_b64_tr_b16 {a(AV + 4*ring, 2)}, v{VV+dt} offset:{o}",
                f"ds_read_b64_tr_b16 {a(AV + 4*ring + 2, 2)}, v{VV+dt} offset:{o + 2048}"]
    state = {"pend": [], "dma": [], "uid": 0}
    def reads_for(desc, g):
        uid, qk, pv = desc
        out = []
        if qk: out.append((kread(qk[0], qk[1], g, g % 4), ("k", uid, g)))
        if pv:
            r = vread(pv[0], pv[1], g, g % 4)
            out += [(r[0], ("v", uid, g)), (r[1], ("v", uid, g))]
        return out
    def mkdesc(qk, pv):
        state["uid"] += 1
        return (state["uid"], qk, pv)

    def step(desc, nxt, par, sm, cneg=True, first_pv=False, sync=None, extra=None):
        uid, qk, pv = desc
        Sq = S0 + (1 - par) * 32
        Ss = S0 + par * 32
        Pw = P0 + par * 16
        Pr = P0 + (1 - par) * 16
        extra = list(extra or [])
        for g in range(8):
            tags = []
            if qk: tags.append(("k", uid, g))
            if pv: tags.append(("v", uid, g))
            w = None
            for t in tags:
                x = ds.wait(t)
                if x: w = x
            if w: A(w)
            mf = []
            if qk:
                for qt in range(2):
                    d = v(Sq + qt*16, 16)
                    c = d if g > 0 else (v(NEGM + qt*16, 16) if cneg else "0")
                    mf.append(mfma(d, a(AK + 4*(g % 4), 4), v(QF + qt*32 + g*4, 4), c))
            if pv:
                u, dt = divmod(g, 4)
                for qt in range(2):
                    d = a(AO + qt*64 + dt*16, 16)
                    c = "0" if (first_pv and u == 0) else d
                    mf.append(mfma(d, a(AV + 4*(g % 4), 4), v(Pr + qt*8 + u*4, 4), c))
            rd = reads_for(desc, g + 2) if g < 6 else (reads_for(nxt, g - 6) if nxt else [])
            gaps = [[] for _ in mf]
            ng = len(mf)
            pre_sync = (g == 6 and sync is not None)
            if sm:
                qt, k4 = divmod(g, 4)
                r = [Ss + qt*16 + 4*k4 + i for i in range(4)]
                l = LA if qt == 0 else LB
                pw = Pw + qt*8 + 2*k4
                ex = [f"v_exp_f32 v{x}, v{x}" for x in r]
                newpend = [f"v_add_f32 v{l}, v{l}, v{r[3]}", f"v_cvt_pk_bf16_f32 v{pw+1}, v{r[2]}, v{r[3]}"]
            else:
                ex = []; newpend = []
            pend = state["pend"]
            if ng == 4:
                G = [[], [], [], []]
                if sm:
                    G[0] = [ex[0]]; G[1] = [ex[1]]; G[2] = [ex[2]]; G[3] = [ex[3]]
                for i, (t, tag) in enumerate(rd): G[min(i, 2)].append(("ds", t, tag))
                G[0] += pend
                if sm:
                    G[1].append(f"v_add_f32 v{l}, v{l}, v{r[0]}")
                    G[2].append(f"v_add_f32 v{l}, v{l}, v{r[1]}")
                    G[2].append(f"v_cvt_pk_bf16_f32 v{pw}, v{r[0]}, v{r[1]}")
                    G[3].append(f"v_add_f32 v{l}, v{l}, v{r[2]}")
            else:
                G = [[], []]
                if sm:
                    G[0] = [ex[0], ex[1]]; G[1] = [ex[2], ex[3]]
                for i, (t, tag) in enumerate(rd): G[min(i, 1)].append(("ds", t, tag))
                G[0] += pend
                if sm:
                    G[0].append(f"v_add_f32 v{l}, v{l}, v{r[0]}")
                    G[1].append(f"v_add_f32 v{l}, v{l}, v{r[1]}")
                    G[1].append(f"v_cvt_pk_bf16_f32 v{pw}, v{r[0]}, v{r[1]}")
                    G[1].append(f"v_add_f32 v{l}, v{l}, v{r[2]}")
            state["pend"] = newpend
            for i, m in enumerate(mf):
                A(m)
                if i == 0 and pre_sync:
                    sync()
                for x in G[i]:
                    if isinstance(x, tuple):
                        if opt.get("nolds") and state.get("inloop"):
                            ds.ops.append(x[2]); ds.retired = len(ds.ops)
                        else: ds.issue(x[1], x[2])
                    elif opt.get("novalu") and state.get("inloop"): pass
                    elif opt.get("noexp") and state.get("inloop") and "v_exp" in x: pass
                    elif opt.get("noadd") and state.get("inloop") and "v_add" in x: pass
                    else: A(x)
                if state["dma"] and (i % 2 == 1 or ng == 2) :
                    pre, ins, tag = state["dma"].pop(0)
                    for pp in pre: A(pp)
                    if pre and "m0" in pre[-1]: A.nop(1)
                    if not (opt.get("nodma") and state.get("inloop")): A(ins)
                if extra and i == ng - 1:
                    for x in extra.pop(0): A(x)
        assert not extra

    def sync_fn(cnt, s, issue=True):
        def f():
            A(f"s_waitcnt vmcnt({cnt})")
            if not (opt.get("nobar") and state.get("inloop")): A("s_barrier")
            if issue:
                assert not state["dma"]
                k = kv_dma("k", s + 3, S_KOFF)
                x = kv_dma("v", s + 2, S_VOFF)
                k[0] = ([f"s_add_u32 s{S_KOFF}, s{S_KOFF}, 16384", f"s_add_u32 s{S_VOFF}, s{S_VOFF}, 16384"] + k[0][0], k[0][1], k[0][2])
                state["dma"] = k + x
        return f

    stamp()
    A.label("attn_go")
    A(f"""
    s_waitcnt vmcnt(8)
    s_barrier
    s_mov_b32 s{S_KOFF}, {2*16384}
    s_mov_b32 s{S_VOFF}, {1*16384}
    v_mov_b32 v{LA}, 0
    v_mov_b32 v{LB}, 0
    """)
    d_m1 = mkdesc((0, 0), None)
    d_0 = mkdesc((0, 1), None)
    for g in (0, 1):
        for (t, tag) in reads_for(d_m1, g): ds.issue(t, tag)
    step(d_m1, d_0, par=1, sm=False, cneg=False)
    A.nop(12)
    A(f"s_cmp_lg_u32 s{S_MODE}, 0")
    A("s_cbranch_scc1 attn_have_max")
    for qt in range(2):
        b = S0 + qt*16; m = 24 + qt
        A(f"v_max3_f32 v{m}, v{b}, v{b+1}, v{b+2}")
        for i in range(3, 15, 2):
            A(f"v_max3_f32 v{m}, v{m}, v{b+i}, v{b+i+1}")
        A(f"v_max_f32 v{m}, v{m}, v{b+15}")
    for qt in range(2):
        m = 24 + qt
        A(f"v_mov_b32 v{26+qt}, v{m}")
    A.nop(2)
    for qt in range(2):
        A(f"v_permlane32_swap_b32 v{24+qt}, v{26+qt}")
    A.nop(1)
    for qt in range(2):
        A(f"v_max_f32 v{24+qt}, v{24+qt}, v{26+qt}")
        A(f"v_add_f32 v{24+qt}, {fhex(float(opt.get('off', 64)))}, v{24+qt}")
    for qt in range(2):
        for i in range(16):
            A(f"v_sub_f32 v{NEGM + qt*16 + i}, 0, v{24+qt}")
    A.label("attn_have_max")
    for qt in range(2):
        for i in range(16):
            A(f"v_add_f32 v{S0 + qt*16 + i}, v{S0 + qt*16 + i}, v{NEGM + qt*16 + i}")
    A.nop(2)
    def mac(s):
        ks, vs = (s + 1) % 4, s % 4
        last = (s == 31)
        return (mkdesc(None if last else (ks, 0), (vs, 0)), mkdesc(None if last else (ks, 1), (vs, 1)))
    m0 = mac(0)
    step(d_0, m0[0], par=0, sm=True, sync=sync_fn(4, 0))
    def macro(m, mnext, s, first=False, sync=None):
        step(m[0], m[1], par=1, sm=True, first_pv=first)
        step(m[1], mnext[0], par=0, sm=True, sync=sync)
    m1 = mac(1)
    macro(m0, m1, 0, first=True, sync=sync_fn(8, 1))
    stamp()
    A(f"s_mov_b32 s{S_CNT}, 7")
    entry_pend = [t[0] for t in ds.pending()]
    entry_state = (list(state["pend"]), [x[1] for x in state["dma"]])
    saved_ret = ds.retired
    A.label("attn_loop")
    state["inloop"] = True
    loop_start = len(A.L)
    ms = [m1] + [mac(s) for s in (2, 3, 4, 5)]
    for i in range(4):
        macro(ms[i], ms[i+1], 1 + i, sync=sync_fn(8, 2 + i))
    state["inloop"] = False
    assert opt.get("nolds") or [t[0] for t in ds.pending()] == entry_pend
    assert entry_state == (list(state["pend"]), [x[1] for x in state["dma"]]), (entry_state, state)
    A(f"s_sub_u32 s{S_CNT}, s{S_CNT}, 1")
    A(f"s_cmp_lg_u32 s{S_CNT}, 0")
    A("s_cbranch_scc1 attn_loop")
    loop_end = len(A.L)
    stamp()
    m29 = ms[4]; m30 = mac(30); m31 = mac(31)
    macro(m29, m30, 29, sync=sync_fn(8, 30, issue=False))
    macro(m30, m31, 30, sync=sync_fn(0, 31, issue=False))
    assert not state["dma"]
    step(m31[0], m31[1], par=1, sm=True)
    vote = [
        None
    ]
    step(m31[1], None, par=0, sm=False)
    assert not state["pend"]
    stamp()
    for (l, t) in ((LA, 21), (LB, 23)):
        A(f"v_mov_b32 v{t}, v{l}")
    A.nop(2)
    for (l, t) in ((LA, 21), (LB, 23)):
        A(f"v_permlane32_swap_b32 v{l}, v{t}")
    A.nop(1)
    for (l, t) in ((LA, 21), (LB, 23)):
        A(f"v_add_f32 v{l}, v{l}, v{t}")
    A(f"""
    v_mov_b32 v1, 0x4e800000                 ; 2^30
    v_cmp_nlt_f32 vcc, v{LA}, v1
    v_cmp_nlt_f32 s[44:45], v{LB}, v1
    s_nop 1
    s_or_b64 vcc, vcc, s[44:45]
    s_cmp_lg_u64 vcc, 0
    s_cselect_b32 s3, 1, 0
    v_mov_b32 v24, s3
    v_mov_b32 v25, s{S_W}
    v_lshlrev_b32 v25, 2, v25
    v_add_u32 v25, {LDS_X}, v25
    ds_write_b32 v25, v24
    v_mov_b32 v25, {LDS_X}
    s_waitcnt lgkmcnt(0)
    s_barrier
    ds_read_b128 v[28:31], v25
    v_rcp_f32 v{LA}, v{LA}
    v_rcp_f32 v{LB}, v{LB}
    s_waitcnt lgkmcnt(0)
    v_or3_b32 v28, v28, v29, v30
    v_or_b32 v28, v28, v31
    s_nop 0
    v_readfirstlane_b32 s3, v28
    s_nop 3
    s_andn2_b32 s3, s3, s{S_MODE}
    s_cmp_lg_u32 s3, 0
    s_cbranch_scc1 attn_fallback
    """)
    nst = 0
    for qt in range(2):
        l = LA if qt == 0 else LB
        for dt in range(4):
            for tp in range(2):
                src = AO + qt*64 + dt*16 + tp*8
                tmp = S0 + (nst % 4) * 8
                pk = P0 + (nst % 4) * 4
                nst += 1
                for i in range(8): A(f"v_accvgpr_read_b32 v{tmp+i}, a{src+i}")
                for i in range(8): A(f"v_mul_f32 v{tmp+i}, v{tmp+i}, v{l}")
                for j in range(4): A(f"v_cvt_pk_bf16_f32 v{pk+j}, v{tmp+2*j}, v{tmp+2*j+1}")
                k = 2*dt + tp
                so = qt * 262144 + (k // 4) * 4096
                A(f"s_mov_b32 s3, {so}")
                A(f"buffer_store_dwordx4 {v(pk, 4)}, v{VL16}, s[{SO}:{SO+3}], s3 offen offset:{(k % 4) * 1024}")
    if prof:
        stamp()
        A("s_waitcnt vmcnt(0)")
        stamp()
        A(f"s_lshl_b32 s3, s2, 2")
        A(f"s_add_u32 s3, s3, s{S_W}")
        A(f"s_lshl_b32 s3, s3, 7")
        A(f"s_add_u32 s3, s3, {PROF_OFF}")
        A("s_add_u32 s56, s56, s3")
        A("s_addc_u32 s57, s57, 0")
        A("v_mov_b32 v1, 0")
        for i in range(2*nstamp[0]):
            A(f"v_mov_b32 v2, s{64+i}")
            A(f"global_store_dword v1, v2, s[56:57] offset:{4*i}")
            A.nop(1)
    A("s_endpgm")
    A.label("attn_fallback")
    A(f"""
    s_mov_b32 s{S_MODE}, 1
    v_mov_b32 v24, 0xff800000
    v_mov_b32 v25, 0xff800000
    s_mov_b32 s{S_KOFF}, 0
    """)
    A.label("attn_fb_loop")
    A("s_barrier")
    for grp in kv_dma("k", 0, S_KOFF):
        pre, ins, tag = grp
        for pp in pre: A(pp)
        if pre: A.nop(1)
        A(ins)
    A("s_waitcnt vmcnt(0)")
    A("s_barrier")
    for sub in range(2):
        for t in range(8):
            A(kread(0, sub, t, t % 4))
            A("s_waitcnt lgkmcnt(0)")
            for qt in range(2):
                d = v(S0 + qt*16, 16)
                A(mfma(d, a(AK + 4*(t % 4), 4), v(QF + qt*32 + t*4, 4), "0" if t == 0 else d))
        A.nop(14)
        for qt in range(2):
            b = S0 + qt*16; m = 24 + qt
            for i in range(0, 16, 2):
                A(f"v_max3_f32 v{m}, v{m}, v{b+i}, v{b+i+1}")
        A.nop(2)
    A(f"""
    s_add_u32 s{S_KOFF}, s{S_KOFF}, 16384
    s_cmp_lt_u32 s{S_KOFF}, 0x80000
    s_cbranch_scc1 attn_fb_loop
    """)
    for qt in range(2):
        A(f"v_mov_b32 v{26+qt}, v{24+qt}")
    A.nop(2)
    for qt in range(2):
        A(f"v_permlane32_swap_b32 v{24+qt}, v{26+qt}")
    A.nop(1)
    for qt in range(2):
        A(f"v_max_f32 v{24+qt}, v{24+qt}, v{26+qt}")
    for qt in range(2):
        for i in range(16):
            A(f"v_sub_f32 v{NEGM + qt*16 + i}, 0, v{24+qt}")
    A("s_barrier")
    for grp in kv_dma("v", 0) + kv_dma("v", 1) + kv_dma("k", 0) + kv_dma("k", 1) + kv_dma("k", 2):
        pre, ins, tag = grp
        for pp in pre: A(pp)
        if pre: A.nop(1)
        A(ins)
    A("s_branch attn_go")
    A.label("attn_done")
    A("s_endpgm")
    check_hazards(A.L, "k2")
    body = A.L[loop_start:loop_end]
    check_hazards(body + body, "k2loop")
    return (L, 256, 256, 163840, A.text(), 512, 256)
```

```python
from gen_common import *
from gen_k2 import DS, mfma

NF, NS = 28, 64
NK = NF + NS
DEPTH = 15
VL16, VWD0, VWD1, VWR0, VWR1 = 2, 3, 4, 5, 6
VRED0, VRED1, VWRT = 7, 8, 9
VX = 10
VXA = 18
WF = 20
ACCF, ACCS = 64, 128
SW2, SWO, SHB, SOB, SX, SOUT = 4, 8, 12, 16, 20, 24
S_W, S_T0, S_T1, S_RING, S_NB, S_QT = 32, 33, 34, 35, 36, 37
S_NLOG2E = 38


def gen_k3(opt=None):
    opt = opt or {}
    A = Asm()
    L = "proj_kernel"
    kernel_head(A, L)
    ds = DS(A)
    vm = VM(A)
    A(f"""
    s_cmp_ge_u32 s2, 256
    s_cbranch_scc1 proj_done
    s_load_dwordx2 s[48:49], s[0:1], 0      ; x
    s_load_dwordx2 s[50:51], s[0:1], 32     ; Wo
    s_load_dwordx4 s[52:55], s[0:1], 56     ; W2, out
    s_load_dwordx2 s[56:57], s[0:1], 80     ; ws
    v_lshrrev_b32 v1, 6, v0
    v_and_b32 v0, 63, v0
    s_and_b32 s3, s2, 7
    s_lshr_b32 s{S_T0}, s2, 3               ; i
    v_readfirstlane_b32 s{S_W}, v1
    s_and_b32 s{S_NB}, s{S_T0}, 7
    s_lshr_b32 s{S_T0}, s{S_T0}, 3
    s_lshl_b32 s3, s3, 2
    s_add_u32 s{S_QT}, s3, s{S_T0}
    s_lshl_b32 s{S_RING}, s{S_W}, 15
    s_mov_b32 s{S_NLOG2E}, {fhex(-LOG2E)}
    v_lshlrev_b32 v{VL16}, 4, v0            ; lane*16
    v_lshrrev_b32 v24, 5, v0                ; hi
    v_and_b32 v25, 15, v0
    v_lshrrev_b32 v26, 4, v0                ; g
    v_lshrrev_b32 v27, 2, v25               ; r4
    v_and_b32 v28, 3, v0                    ; c
    v_and_b32 v29, 1, v26                   ; g2
    v_lshl_add_u32 v30, v24, 2, v27
    v_lshlrev_b32 v31, 7, v30
    v_lshl_add_u32 v31, v29, 5, v31
    v_add_u32 v31, s{S_RING}, v31
    v_and_b32 v1, 1, v28
    v_lshlrev_b32 v1, 1, v1
    v_lshrrev_b32 v30, 1, v28
    v_or_b32 v1, v1, v30                    ; sigma(c)
    v_lshl_add_u32 v31, v1, 3, v31
    v_lshrrev_b32 v1, 1, v27                ; r4>>1
    v_lshl_add_u32 v{VWR0}, v1, 6, v31
    v_xor_b32 v1, 1, v1
    v_lshl_add_u32 v{VWR1}, v1, 6, v31
    ; W dma voffsets: (l/8)*1024 + ((l%8) ^ (g2<<2))*16
    v_lshrrev_b32 v1, 3, v0
    v_and_b32 v30, 7, v0
    v_lshlrev_b32 v31, 2, v29
    v_xor_b32 v30, v30, v31
    v_lshlrev_b32 v30, 4, v30
    v_lshl_add_u32 v{VWD0}, v1, 10, v30
    v_add_u32 v{VWD1}, {8192 - 1024}, v{VWD0}
    v_add_u32 v{VWRT}, s{S_RING}, v{VL16}
    s_lshl_b32 s3, s{S_W}, 12
    v_add_u32 v{VRED0}, s3, v{VL16}
    v_add_u32 v{VRED1}, 65536, v{VRED0}
    ; x / out address: row*1024 + (32ct + 8hi)*2 ; row = 32*qt + l%32 ; ct = w/2, qt = w%2
    v_and_b32 v1, 31, v0
    s_and_b32 s3, s{S_W}, 1
    s_lshl_b32 s3, s3, 5
    v_add_u32 v1, s3, v1
    v_lshlrev_b32 v1, 10, v1
    v_lshl_add_u32 v1, v24, 4, v1
    s_lshr_b32 s3, s{S_W}, 1
    s_lshl_b32 s3, s3, 6
    v_add_u32 v{VXA}, s3, v1
    s_waitcnt lgkmcnt(0)
    """)
    A(f"""
    s_lshl_b32 s{S_T0}, s{S_NB}, 7          ; nb*128
    s_mul_i32 s3, s{S_W}, {NF * 16384}
    s_add_u32 s3, s3, s{S_T0}
    s_add_u32 s{SW2}, s52, s3
    s_addc_u32 s{SW2+1}, s53, 0
    s_sub_u32 s{SW2+2}, {1792 * 1024}, s3
    s_mov_b32 s{SW2+3}, 0x20000
    s_mul_i32 s3, s{S_W}, {NS * 16384}
    s_add_u32 s3, s3, s{S_T0}
    s_add_u32 s{SWO}, s50, s3
    s_addc_u32 s{SWO+1}, s51, 0
    s_sub_u32 s{SWO+2}, {4096 * 1024}, s3
    s_mov_b32 s{SWO+3}, 0x20000
    s_mul_i32 s3, s{S_QT}, {2 * 114688}
    s_mul_i32 s{S_T1}, s{S_W}, {NF * 1024}
    s_add_u32 s3, s3, s{S_T1}
    s_add_u32 s3, s3, {H_OFF}
    s_add_u32 s{SHB}, s56, s3
    s_addc_u32 s{SHB+1}, s57, 0
    s_sub_u32 s{SHB+2}, {2 * 114688}, s{S_T1}
    s_mov_b32 s{SHB+3}, 0x20000
    s_lshl_b32 s3, s{S_QT}, 19
    s_lshl_b32 s{S_T1}, s{S_W}, 16
    s_add_u32 s3, s3, s{S_T1}
    s_add_u32 s3, s3, {O_OFF}
    s_add_u32 s{SOB}, s56, s3
    s_addc_u32 s{SOB+1}, s57, 0
    s_sub_u32 s{SOB+2}, {2 * 262144}, s{S_T1}
    s_mov_b32 s{SOB+3}, 0x20000
    s_lshl_b32 s3, s{S_QT}, 16
    s_add_u32 s3, s3, s{S_T0}
    s_add_u32 s{SX}, s48, s3
    s_addc_u32 s{SX+1}, s49, 0
    s_sub_u32 s{SX+2}, {2048 * 1024}, s3
    s_mov_b32 s{SX+3}, 0x20000
    s_add_u32 s{SOUT}, s54, s3
    s_addc_u32 s{SOUT+1}, s55, 0
    s_sub_u32 s{SOUT+2}, {2048 * 1024}, s3
    s_mov_b32 s{SOUT+3}, 0x20000
    """)

    def loads(n):
        f = n < NF
        ks = n if f else n - NF
        sw = SW2 if f else SWO
        sb = SHB if f else SOB
        qs = 114688 if f else 262144
        slot = n % 16
        g = []
        g.append(([f"s_add_u32 m0, s{S_RING}, {slot * 2048}", f"s_mov_b32 s{S_T0}, {ks * 16384}"],
                  f"buffer_load_dwordx4 v{VWD0}, s[{sw}:{sw+3}], s{S_T0} offen lds", ("w", n)))
        g.append(([], f"buffer_load_dwordx4 v{VWD1}, s[{sw}:{sw+3}], s{S_T0} offen offset:1024 lds", ("w", n)))
        for qt in range(2):
            g.append(([f"s_mov_b32 s{S_T1}, {ks * 1024 + qt * qs}"],
                      f"buffer_load_dwordx4 {a(slot * 8 + qt * 4, 4)}, v{VL16}, s[{sb}:{sb+3}], s{S_T1} offen", ("b", n)))
        return g
    def emit_vm(grp):
        pre, ins, tag = grp
        for p in pre: A(p)
        vm.issue(ins, tag)
    def wfrag(n, ct): return WF + (n % 3) * 8 + ct * 4
    def w_reads(n):
        slot = n % 16
        out = []
        for ct in range(2):
            for e2 in range(2):
                out.append((f"ds_read_b64_tr_b16 {v(wfrag(n, ct) + 2*e2, 2)}, v{VWR0 + ct} offset:{slot * 2048 + e2 * 1024}", ("w", n)))
        return out

    for n in range(DEPTH):
        for g in loads(n): emit_vm(g)
    vm.wait([("w", 1)])
    for n in (0, 1):
        for (t, tag) in w_reads(n): ds.issue(t, tag)
    for n in range(NK):
        f = n < NF
        ks = n if f else n - NF
        acc = ACCF if f else ACCS
        tags = [("b", n)]
        if n + 2 < NK: tags.append(("w", n + 2))
        vm.wait(tags)
        w = ds.wait(("w", n))
        if w: A(w)
        rd = w_reads(n + 2) if n + 2 < NK else []
        ld = loads(n + DEPTH) if n + DEPTH < NK else []
        if n + DEPTH == NK:
            ld = [([], f"buffer_load_dwordx4 {v(VX, 4)}, v{VXA}, s[{SX}:{SX+3}], 0 offen", ("x", 0)),
                  ([], f"buffer_load_dwordx4 {v(VX + 4, 4)}, v{VXA}, s[{SX}:{SX+3}], 0 offen offset:32", ("x", 0))]
        for ct in range(2):
            for qt in range(2):
                d = v(acc + (ct * 2 + qt) * 16, 16)
                A(mfma(d, v(wfrag(n, ct), 4), a((n % 16) * 8 + qt * 4, 4), "0" if ks == 0 else d))
                if rd:
                    t, tag = rd.pop(0); ds.issue(t, tag)
                if ld: emit_vm(ld.pop(0))
        assert not ld and not rd
    fw = [(ACCF + 4*i, i * 1024) for i in range(16)]
    sw_ = [(ACCS + 4*i, 16384 + i * 1024) for i in range(16)]
    for (r, o) in fw:
        A(f"ds_write_b128 v{VWRT}, {v(r, 4)} offset:{o}")
    A.nop(4)
    for (r, o) in sw_:
        A(f"ds_write_b128 v{VWRT}, {v(r, 4)} offset:{o}")
    A("s_waitcnt lgkmcnt(0)")
    A("s_barrier")
    def red_reads(accoff, dst):
        for u in range(4):
            for j in range(4):
                vb = VRED0 if u < 2 else VRED1
                A(f"ds_read_b128 {v(dst + u*16 + j*4, 4)}, v{vb} offset:{(u % 2) * 32768 + accoff + j * 1024}")
    red_reads(0, 64)
    red_reads(16384, 128)
    A("s_waitcnt lgkmcnt(15)")
    for i in range(16):
        A(f"v_add_f32 v{64+i}, v{64+i}, v{80+i}")
        A(f"v_add_f32 v{96+i}, v{96+i}, v{112+i}")
    for i in range(16):
        A(f"v_add_f32 v{64+i}, v{64+i}, v{96+i}")
    for i in range(16):
        A(f"v_mul_f32 v{80+i}, s{S_NLOG2E}, v{64+i}")
    for i in range(16):
        A(f"v_exp_f32 v{80+i}, v{80+i}")
    for i in range(16):
        A(f"v_add_f32 v{80+i}, 1.0, v{80+i}")
    for i in range(16):
        A(f"v_rcp_f32 v{80+i}, v{80+i}")
    for i in range(16):
        A(f"v_mul_f32 v{64+i}, v{64+i}, v{80+i}")
    A("s_waitcnt lgkmcnt(0)")
    for i in range(16):
        A(f"v_add_f32 v{128+i}, v{128+i}, v{144+i}")
        A(f"v_add_f32 v{160+i}, v{160+i}, v{176+i}")
    for i in range(16):
        A(f"v_add_f32 v{128+i}, v{128+i}, v{160+i}")
    vm.wait([("x", 0)])
    for i in range(8):
        A(f"v_lshlrev_b32 v{96+2*i}, 16, v{VX+i}")
        A(f"v_and_b32 v{97+2*i}, 0xffff0000, v{VX+i}")
    for i in range(16):
        A(f"v_fmac_f32 v{96+i}, v{128+i}, v{64+i}")
    for i in range(8):
        A(f"v_cvt_pk_bf16_f32 v{112+i}, v{96+2*i}, v{97+2*i}")
    A(f"buffer_store_dwordx4 {v(112, 4)}, v{VXA}, s[{SOUT}:{SOUT+3}], 0 offen")
    A(f"buffer_store_dwordx4 {v(116, 4)}, v{VXA}, s[{SOUT}:{SOUT+3}], 0 offen offset:32")
    A.label("proj_done")
    A("s_endpgm")
    check_hazards(A.L, "k3")
    return (L, 256, 256, 131072, A.text(), 512, 256)
```

```python
import sys
from gen_common import *
from gen_k1 import gen_k1
from gen_k2 import gen_k2
def main():
    out = sys.argv[1]
    opt = {}
    for kv in sys.argv[2:]:
        k, x = kv.split("=")
        opt[k] = int(x) if x.lstrip("-").isdigit() else x
    ks = [gen_k1(), gen_k2(opt)]
    try:
        from gen_k3 import gen_k3
        ks.append(gen_k3(opt))
    except ImportError:
        pass
    open(out, "w").write(assemble_file(ks))
main()
```

```python
from gen_common import *
from gen_k2 import DS, mfma

NF, NS = 28, 64
NK = NF + NS
DEPTH = 15
VL16, VWD0, VWD1, VWR0, VWR1 = 2, 3, 4, 5, 6
VRED0, VRED1, VWRT = 7, 8, 9
VX = 10
VXA = 18
WF = 20
ACCF, ACCS = 64, 128
SW2, SWO, SHB, SOB, SX, SOUT = 4, 8, 12, 16, 20, 24
S_W, S_T0, S_T1, S_RING, S_NB, S_QT = 32, 33, 34, 35, 36, 37
S_NLOG2E = 38


def gen_k3(opt=None):
    opt = opt or {}
    A = Asm()
    L = "proj_kernel"
    kernel_head(A, L)
    ds = DS(A)
    vm = VM(A)
    prof = opt.get("prof3", 0)
    nstamp = [0]
    def stamp():
        if not prof: return
        i = nstamp[0]; nstamp[0] += 1
        A("s_memtime s[58:59]")
        A("s_memrealtime s[60:61]")
        A("s_waitcnt lgkmcnt(0)")
        A(f"s_mov_b32 s{64+2*i}, s58")
        A(f"s_mov_b32 s{65+2*i}, s60")
    A(f"""
    s_cmp_ge_u32 s2, 256
    s_cbranch_scc1 proj_done
    """)
    stamp()
    A(f"""
    s_load_dwordx2 s[48:49], s[0:1], 0      ; x
    s_load_dwordx2 s[50:51], s[0:1], 32     ; Wo
    s_load_dwordx4 s[52:55], s[0:1], 56     ; W2, out
    s_load_dwordx2 s[56:57], s[0:1], 80     ; ws
    v_lshrrev_b32 v1, 6, v0
    v_and_b32 v0, 63, v0
    s_and_b32 s3, s2, 7
    s_lshr_b32 s{S_T0}, s2, 3               ; i
    v_readfirstlane_b32 s{S_W}, v1
    s_and_b32 s{S_NB}, s{S_T0}, 7
    s_lshr_b32 s{S_T0}, s{S_T0}, 3
    s_lshl_b32 s3, s3, 2
    s_add_u32 s{S_QT}, s3, s{S_T0}
    s_lshl_b32 s{S_RING}, s{S_W}, 15
    s_mov_b32 s{S_NLOG2E}, {fhex(-LOG2E)}
    v_lshlrev_b32 v{VL16}, 4, v0            ; lane*16
    v_lshrrev_b32 v24, 5, v0                ; hi
    v_and_b32 v25, 15, v0
    v_lshrrev_b32 v26, 4, v0                ; g
    v_lshrrev_b32 v27, 2, v25               ; r4
    v_and_b32 v28, 3, v0                    ; c
    v_and_b32 v29, 1, v26                   ; g2
    v_lshl_add_u32 v30, v24, 2, v27
    v_lshlrev_b32 v31, 7, v30
    v_lshl_add_u32 v31, v29, 5, v31
    v_add_u32 v31, s{S_RING}, v31
    v_and_b32 v1, 1, v28
    v_lshlrev_b32 v1, 1, v1
    v_lshrrev_b32 v30, 1, v28
    v_or_b32 v1, v1, v30                    ; sigma(c)
    v_lshl_add_u32 v31, v1, 3, v31
    v_lshrrev_b32 v1, 1, v27                ; r4>>1
    v_lshl_add_u32 v{VWR0}, v1, 6, v31
    v_xor_b32 v1, 1, v1
    v_lshl_add_u32 v{VWR1}, v1, 6, v31
    ; W dma voffsets: (l/8)*1024 + ((l%8) ^ (g2<<2))*16
    v_lshrrev_b32 v1, 3, v0
    v_and_b32 v30, 7, v0
    v_lshlrev_b32 v31, 2, v29
    v_xor_b32 v30, v30, v31
    v_lshlrev_b32 v30, 4, v30
    v_lshl_add_u32 v{VWD0}, v1, 10, v30
    v_add_u32 v{VWD1}, {8192 - 1024}, v{VWD0}
    v_add_u32 v{VWRT}, s{S_RING}, v{VL16}
    s_lshl_b32 s3, s{S_W}, 12
    v_add_u32 v{VRED0}, s3, v{VL16}
    v_add_u32 v{VRED1}, 65536, v{VRED0}
    ; x / out address: row*1024 + (32ct + 8hi)*2 ; row = 32*qt + l%32 ; ct = w/2, qt = w%2
    v_and_b32 v1, 31, v0
    s_and_b32 s3, s{S_W}, 1
    s_lshl_b32 s3, s3, 5
    v_add_u32 v1, s3, v1
    v_lshlrev_b32 v1, 10, v1
    v_lshl_add_u32 v1, v24, 4, v1
    s_lshr_b32 s3, s{S_W}, 1
    s_lshl_b32 s3, s3, 6
    v_add_u32 v{VXA}, s3, v1
    s_waitcnt lgkmcnt(0)
    """)
    A(f"""
    s_lshl_b32 s{S_T0}, s{S_NB}, 7          ; nb*128
    s_mul_i32 s3, s{S_W}, {NF * 16384}
    s_add_u32 s3, s3, s{S_T0}
    s_add_u32 s{SW2}, s52, s3
    s_addc_u32 s{SW2+1}, s53, 0
    s_sub_u32 s{SW2+2}, {1792 * 1024}, s3
    s_mov_b32 s{SW2+3}, 0x20000
    s_mul_i32 s3, s{S_W}, {NS * 16384}
    s_add_u32 s3, s3, s{S_T0}
    s_add_u32 s{SWO}, s50, s3
    s_addc_u32 s{SWO+1}, s51, 0
    s_sub_u32 s{SWO+2}, {4096 * 1024}, s3
    s_mov_b32 s{SWO+3}, 0x20000
    s_mul_i32 s3, s{S_QT}, {2 * 114688}
    s_mul_i32 s{S_T1}, s{S_W}, {NF * 1024}
    s_add_u32 s3, s3, s{S_T1}
    s_add_u32 s3, s3, {H_OFF}
    s_add_u32 s{SHB}, s56, s3
    s_addc_u32 s{SHB+1}, s57, 0
    s_sub_u32 s{SHB+2}, {2 * 114688}, s{S_T1}
    s_mov_b32 s{SHB+3}, 0x20000
    s_lshl_b32 s3, s{S_QT}, 19
    s_lshl_b32 s{S_T1}, s{S_W}, 16
    s_add_u32 s3, s3, s{S_T1}
    s_add_u32 s3, s3, {O_OFF}
    s_add_u32 s{SOB}, s56, s3
    s_addc_u32 s{SOB+1}, s57, 0
    s_sub_u32 s{SOB+2}, {2 * 262144}, s{S_T1}
    s_mov_b32 s{SOB+3}, 0x20000
    s_lshl_b32 s3, s{S_QT}, 16
    s_add_u32 s3, s3, s{S_T0}
    s_add_u32 s{SX}, s48, s3
    s_addc_u32 s{SX+1}, s49, 0
    s_sub_u32 s{SX+2}, {2048 * 1024}, s3
    s_mov_b32 s{SX+3}, 0x20000
    s_add_u32 s{SOUT}, s54, s3
    s_addc_u32 s{SOUT+1}, s55, 0
    s_sub_u32 s{SOUT+2}, {2048 * 1024}, s3
    s_mov_b32 s{SOUT+3}, 0x20000
    """)

    def loads(n):
        f = n < NF
        ks = n if f else n - NF
        sw = SW2 if f else SWO
        sb = SHB if f else SOB
        qs = 114688 if f else 262144
        slot = n % 16
        g = []
        g.append(([f"s_add_u32 m0, s{S_RING}, {slot * 2048}", f"s_mov_b32 s{S_T0}, {ks * 16384}"],
                  f"buffer_load_dwordx4 v{VWD0}, s[{sw}:{sw+3}], s{S_T0} offen lds", ("w", n)))
        g.append(([], f"buffer_load_dwordx4 v{VWD1}, s[{sw}:{sw+3}], s{S_T0} offen offset:1024 lds", ("w", n)))
        for qt in range(2):
            g.append(([f"s_mov_b32 s{S_T1}, {ks * 1024 + qt * qs}"],
                      f"buffer_load_dwordx4 {a(slot * 8 + qt * 4, 4)}, v{VL16}, s[{sb}:{sb+3}], s{S_T1} offen", ("b", n)))
        return g
    def emit_vm(grp):
        pre, ins, tag = grp
        for p in pre: A(p)
        vm.issue(ins, tag)
    def wfrag(n, ct): return WF + (n % 3) * 8 + ct * 4
    def w_reads(n):
        slot = n % 16
        out = []
        for ct in range(2):
            for e2 in range(2):
                out.append((f"ds_read_b64_tr_b16 {v(wfrag(n, ct) + 2*e2, 2)}, v{VWR0 + ct} offset:{slot * 2048 + e2 * 1024}", ("w", n)))
        return out

    for n in range(DEPTH):
        for g in loads(n): emit_vm(g)
    vm.wait([("w", 1)])
    stamp()
    for n in (0, 1):
        for (t, tag) in w_reads(n): ds.issue(t, tag)
    for n in range(NK):
        f = n < NF
        ks = n if f else n - NF
        acc = ACCF if f else ACCS
        if n in (NF, NF + 32): stamp()
        tags = [("b", n)]
        if n + 2 < NK: tags.append(("w", n + 2))
        vm.wait(tags)
        w = ds.wait(("w", n))
        if w: A(w)
        rd = w_reads(n + 2) if n + 2 < NK else []
        ld = loads(n + DEPTH) if n + DEPTH < NK else []
        if n + DEPTH == NK:
            ld = [([], f"buffer_load_dwordx4 {v(VX, 4)}, v{VXA}, s[{SX}:{SX+3}], 0 offen", ("x", 0)),
                  ([], f"buffer_load_dwordx4 {v(VX + 4, 4)}, v{VXA}, s[{SX}:{SX+3}], 0 offen offset:32", ("x", 0))]
        for ct in range(2):
            for qt in range(2):
                d = v(acc + (ct * 2 + qt) * 16, 16)
                A(mfma(d, v(wfrag(n, ct), 4), a((n % 16) * 8 + qt * 4, 4), "0" if ks == 0 else d))
                if rd:
                    t, tag = rd.pop(0); ds.issue(t, tag)
                if ld: emit_vm(ld.pop(0))
        assert not ld and not rd
    stamp()
    fw = [(ACCF + 4*i, i * 1024) for i in range(16)]
    sw_ = [(ACCS + 4*i, 16384 + i * 1024) for i in range(16)]
    for (r, o) in fw:
        A(f"ds_write_b128 v{VWRT}, {v(r, 4)} offset:{o}")
    A.nop(4)
    for (r, o) in sw_:
        A(f"ds_write_b128 v{VWRT}, {v(r, 4)} offset:{o}")
    A("s_waitcnt lgkmcnt(0)")
    A("s_barrier")
    def red_reads(accoff, dst):
        for u in range(4):
            for j in range(4):
                vb = VRED0 if u < 2 else VRED1
                A(f"ds_read_b128 {v(dst + u*16 + j*4, 4)}, v{vb} offset:{(u % 2) * 32768 + accoff + j * 1024}")
    red_reads(0, 64)
    red_reads(16384, 128)
    A("s_waitcnt lgkmcnt(15)")
    for i in range(16):
        A(f"v_add_f32 v{64+i}, v{64+i}, v{80+i}")
        A(f"v_add_f32 v{96+i}, v{96+i}, v{112+i}")
    for i in range(16):
        A(f"v_add_f32 v{64+i}, v{64+i}, v{96+i}")
    for i in range(16):
        A(f"v_mul_f32 v{80+i}, s{S_NLOG2E}, v{64+i}")
    for i in range(16):
        A(f"v_exp_f32 v{80+i}, v{80+i}")
    for i in range(16):
        A(f"v_add_f32 v{80+i}, 1.0, v{80+i}")
    for i in range(16):
        A(f"v_rcp_f32 v{80+i}, v{80+i}")
    for i in range(16):
        A(f"v_mul_f32 v{64+i}, v{64+i}, v{80+i}")
    A("s_waitcnt lgkmcnt(0)")
    for i in range(16):
        A(f"v_add_f32 v{128+i}, v{128+i}, v{144+i}")
        A(f"v_add_f32 v{160+i}, v{160+i}, v{176+i}")
    for i in range(16):
        A(f"v_add_f32 v{128+i}, v{128+i}, v{160+i}")
    vm.wait([("x", 0)])
    for i in range(8):
        A(f"v_lshlrev_b32 v{96+2*i}, 16, v{VX+i}")
        A(f"v_and_b32 v{97+2*i}, 0xffff0000, v{VX+i}")
    for i in range(16):
        A(f"v_fmac_f32 v{96+i}, v{128+i}, v{64+i}")
    for i in range(8):
        A(f"v_cvt_pk_bf16_f32 v{112+i}, v{96+2*i}, v{97+2*i}")
    A(f"buffer_store_dwordx4 {v(112, 4)}, v{VXA}, s[{SOUT}:{SOUT+3}], 0 offen")
    A(f"buffer_store_dwordx4 {v(116, 4)}, v{VXA}, s[{SOUT}:{SOUT+3}], 0 offen offset:32")
    if prof:
        stamp()
        A("s_waitcnt vmcnt(0)")
        stamp()
        A(f"s_lshl_b32 s3, s2, 2")
        A(f"s_add_u32 s3, s3, s{S_W}")
        A(f"s_lshl_b32 s3, s3, 7")
        A(f"s_add_u32 s3, s3, {PROF_OFF + 0x100000}")
        A("s_add_u32 s56, s56, s3")
        A("s_addc_u32 s57, s57, 0")
        A("v_mov_b32 v1, 0")
        for i in range(2*nstamp[0]):
            A(f"v_mov_b32 v2, s{64+i}")
            A(f"global_store_dword v1, v2, s[56:57] offset:{4*i}")
            A.nop(1)
        print("k3 stamps", nstamp[0])
    A.label("proj_done")
    A("s_endpgm")
    check_hazards(A.L, "k3")
    return (L, 256, 256, 131072, A.text(), 512, 256)
```

```python
from gen_common import *

VK = 2
VV = 10
VKD = 14
VVD = 18
VL16 = 19
LA, LB = 20, 22
WR1, WRL, WRH = 24, 26, 28
WD1, WDQ = 30, 31
QF = 32
S0 = 96
NEGM = 160
P0 = 192
WF = 224
TWF = 208
TWD0, TWD1, TWR0, TWR1, TXA = 232, 233, 234, 235, 236
TFW, TFR, TSW, TSR = 237, 240, 241, 242
THP, TOP, TOWN = 245, 246, 247
ACCF, ACCS = 96, 32
AO = 0
AK = 128
AV = 144
AB = 160
SK, SV, SWQ, SXN, SO, SW1, SH = 4, 8, 12, 16, 20, 24, 28
SW2, SWO, SHB, SOB, SX, SOUT = 12, 16, 24, 28, 64, 68
S_HEAD, S_QB, S_W, S_W4K, S_W2K, S_KOFF, S_VOFF, S_CNT, S_T0, S_T1, S_MODE = 32, 33, 34, 35, 36, 37, 38, 39, 40, 41, 42
S_T2 = 43
S_SCALE, S_NLOG2E = 46, 47
S_DBG = 62
S_QT, S_NB, S_RING, S_HQ, S_OQ, S_SPIN = 72, 73, 74, 75, 77, 79
S_PX, S_PWO, S_PW2, S_POUT = 84, 86, 88, 90
LDS_V = 65536
LDS_EX = 98304
LDS_VOTE = 147456
NF, NS = 28, 64
NK = NF + NS
RING = 12
DEPTH = 11
RINGB = RING * 2048


class DS:
    def __init__(self, A):
        self.A = A; self.ops = []; self.retired = 0
    def issue(self, txt, tag):
        self.A(txt); self.ops.append(tag)
    def wait(self, tag):
        last = -1
        for i, t in enumerate(self.ops):
            if t == tag: last = i
        assert last >= 0, tag
        n = len(self.ops) - 1 - last
        done = last + 1
        if done <= self.retired: return None
        n = min(n, 15)
        self.retired = len(self.ops) - n
        return f"s_waitcnt lgkmcnt({n})"
    def waitall(self):
        self.retired = len(self.ops)
        return "s_waitcnt lgkmcnt(0)"
    def pending(self):
        return self.ops[self.retired:]


def mfma(d, a_, b_, c_):
    return f"v_mfma_f32_32x32x16_bf16 {d}, {a_}, {b_}, {c_}"


def gen_f(opt=None):
    opt = opt or {}
    A = Asm()
    L = opt.get("label", "main_kernel")
    kernel_head(A, L)
    ds = DS(A)
    vm = VM(A)
    prof = opt.get("prof", 0)
    SC1 = " sc1" if opt.get("sc1", 1) else ""
    nstamp = [0]
    def stamp(first=False):
        if not prof: return
        i = nstamp[0]; nstamp[0] += 1
        A("s_memtime s[58:59]")
        A("s_memrealtime s[60:61]")
        A("s_waitcnt lgkmcnt(0)")
        if first:
            A("s_mov_b32 s96, s58")
            A("s_mov_b32 s97, s60")
        else:
            A(f"v_writelane_b32 v0, s58, {2*i}")
            A(f"v_writelane_b32 v0, s60, {2*i+1}")
    A(f"""
    s_cmp_ge_u32 s2, 256
    s_cbranch_scc1 main_done
    """)
    stamp(first=True)
    A(f"""
    s_load_dwordx4 s[48:51], s[0:1], 8      ; K, V
    s_load_dwordx2 s[52:53], s[0:1], 24     ; Wq
    s_load_dwordx2 s[54:55], s[0:1], 48     ; W1
    s_load_dwordx2 s[56:57], s[0:1], 80     ; ws
    s_load_dwordx2 s[{S_DBG}:{S_DBG+1}], s[0:1], 72
    s_load_dwordx2 s[{S_PX}:{S_PX+1}], s[0:1], 0
    s_load_dwordx2 s[{S_PWO}:{S_PWO+1}], s[0:1], 32
    s_load_dwordx4 s[{S_PW2}:{S_PW2+3}], s[0:1], 56    ; W2, out
    v_lshrrev_b32 v1, 6, v0
    v_and_b32 v0, 63, v0
    s_and_b32 s3, s2, 7
    s_lshr_b32 s{S_T0}, s2, 3               ; i = 0..31
    v_readfirstlane_b32 s{S_W}, v1
    s_and_b32 s{S_NB}, s{S_T0}, 7
    s_lshr_b32 s{S_T1}, s{S_T0}, 3          ; i/8 = 0..3
    s_lshl_b32 s{S_QT}, s3, 2
    s_add_u32 s{S_QT}, s{S_QT}, s{S_T1}
    s_lshl_b32 s{S_T1}, s{S_T1}, 3
    s_add_u32 s{S_HEAD}, s{S_T1}, s3        ; head = x + 8*(i/8)
    s_and_b32 s{S_QB}, s{S_T0}, 7           ; q block
    s_lshl_b32 s{S_W4K}, s{S_W}, 12
    s_lshl_b32 s{S_W2K}, s{S_W}, 11
    s_mov_b32 s{S_SCALE}, {fhex(LOG2E * 128 ** -0.5)}
    s_mov_b32 s{S_NLOG2E}, {fhex(-LOG2E)}
    s_mov_b32 s{S_MODE}, 0
    """)
    HI, L16, G, R4, C, G2, T0, T1, T2 = 32, 33, 34, 35, 36, 37, 38, 39, 40
    A(f"""
    v_lshlrev_b32 v{VL16}, 4, v0            ; lane*16
    v_lshrrev_b32 v{HI}, 5, v0              ; hi
    v_and_b32 v{L16}, 15, v0                ; l%16
    v_lshrrev_b32 v{G}, 4, v0               ; g = l/16
    v_lshrrev_b32 v{R4}, 2, v{L16}          ; r4
    v_and_b32 v{C}, 3, v0                   ; c
    v_and_b32 v{G2}, 1, v{G}                ; g2
    ; W dma voffsets: (16w + l/8)*stride + ((l%8) ^ (g2<<2))*16
    v_lshrrev_b32 v1, 3, v0
    s_lshl_b32 s3, s{S_W}, 4
    v_add_u32 v1, s3, v1                    ; row
    v_and_b32 v{T0}, 7, v0
    v_lshlrev_b32 v{T1}, 2, v{G2}
    v_xor_b32 v{T0}, v{T0}, v{T1}
    v_lshlrev_b32 v{T0}, 4, v{T0}
    v_mul_u32_u24 v{T1}, 3584, v1
    v_add_u32 v{WD1}, v{T1}, v{T0}
    v_lshl_add_u32 v{WDQ}, v1, 13, v{T0}
    s_waitcnt lgkmcnt(0)
    """)
    A(f"""
    s_lshl_b32 s3, s{S_HEAD}, 8
    s_add_u32 s{SWQ}, s52, s3
    s_addc_u32 s{SWQ+1}, s53, 0
    s_sub_u32 s{SWQ+2}, {512*8192}, s3
    s_mov_b32 s{SWQ+3}, 0x20000
    s_min_u32 s3, s{S_HEAD}, 27
    s_lshl_b32 s3, s3, 7
    s_add_u32 s{SW1}, s54, s3
    s_addc_u32 s{SW1+1}, s55, 0
    s_sub_u32 s{SW1+2}, {512*3584}, s3
    s_mov_b32 s{SW1+3}, 0x20000
    s_lshl_b32 s{S_T0}, s{S_QB}, 3
    s_lshl_b32 s{S_T1}, s{S_W}, 1
    s_add_u32 s{S_T2}, s{S_T0}, s{S_T1}
    s_lshl_b32 s3, s{S_T2}, 15
    s_add_u32 s3, s3, {XN_OFF}
    s_add_u32 s{SXN}, s56, s3
    s_addc_u32 s{SXN+1}, s57, 0
    s_mov_b32 s{SXN+2}, 0x10000
    s_mov_b32 s{SXN+3}, 0x20000
    s_lshl_b32 s3, s{S_T2}, 18
    s_lshl_b32 s{S_T1}, s{S_HEAD}, 13
    s_add_u32 s3, s3, s{S_T1}
    s_add_u32 s3, s3, {O_OFF}
    s_add_u32 s{SO}, s56, s3
    s_addc_u32 s{SO+1}, s57, 0
    s_mov_b32 s{SO+2}, {262144 + 8192}
    s_mov_b32 s{SO+3}, 0x20000
    s_mul_i32 s3, s{S_T2}, 114688
    s_lshl_b32 s{S_T1}, s{S_HEAD}, 12
    s_add_u32 s3, s3, s{S_T1}
    s_add_u32 s3, s3, {H_OFF}
    s_add_u32 s{SH}, s56, s3
    s_addc_u32 s{SH+1}, s57, 0
    s_cmp_lt_u32 s{S_HEAD}, 28
    s_cselect_b32 s{SH+2}, {114688 + 4096}, 0
    s_mov_b32 s{SH+3}, 0x20000
    """)
    def unit(kind, st):
        if kind == "w1": return 12 + st if st < 4 else 8 + st - 4
        if kind == "ql": return 6 + st if st < 2 else st - 2
        return 16 + st if st < 4 else 12 + st - 4
    def w_dma(kind, st):
        lds = unit(kind, st) * 8192
        if kind == "w1": stride = 3584; base = st * 64 * stride; sr = SW1; vo = WD1
        else: stride = 8192; base = st * 64 * stride + (128 if kind == "qh" else 0); sr = SWQ; vo = WDQ
        g = []
        for i in range(2):
            pre = []
            if i == 0: pre.append(f"s_add_u32 m0, s{S_W2K}, {lds}")
            pre.append(f"s_mov_b32 s{S_T0}, {base + i * (8 * stride - 1024)}")
            g.append((pre, f"buffer_load_dwordx4 v{vo}, s[{sr}:{sr+3}], s{S_T0} offen offset:{i*1024} lds", (kind, st)))
        return g
    def xn_ld(st):
        g = []
        for qt in range(2):
            for kk in range(4):
                ks = st * 4 + kk
                pre = [f"s_mov_b32 s{S_T1}, {qt * 32768 + st * 4096}"] if kk == 0 else []
                g.append((pre, f"buffer_load_dwordx4 {a(qt*128 + ks*4, 4)}, v{VL16}, s[{SXN}:{SXN+3}], s{S_T1} offen offset:{kk*1024}", ("xn", st)))
        return g
    def kv_dma(kind, stage, soff=None):
        slot = stage % 4
        g = []
        lds = slot * 16384 + (LDS_V if kind == "v" else 0)
        sr = SK if kind == "k" else SV
        for i in range(4):
            pre = []
            if i == 0:
                pre.append(f"s_add_u32 m0, s{S_W4K}, {lds}")
                if soff is None:
                    pre.append(f"s_mov_b32 s{S_T2}, {stage * 16384}")
            so = S_T2 if soff is None else soff
            vo = VKD + i if kind == "k" else VVD
            g.append((pre, f"buffer_load_dwordx4 v{vo}, s[{sr}:{sr+3}], s{so} offen offset:{i*1024} lds", (kind, stage)))
        return g
    def emit_vm(grp):
        pre, ins, tag = grp
        for p in pre: A(p)
        if pre and "m0" in pre[-1]: A.nop(1)
        vm.issue(ins, tag)

    q1 = []
    for st in range(8):
        q1 += w_dma("w1", st) + w_dma("ql", st) + xn_ld(st)
    for st in range(4): q1 += w_dma("qh", st)
    for _ in range(24): emit_vm(q1.pop(0))
    A(f"""
    s_lshl_b32 s3, s{S_HEAD}, 19
    s_add_u32 s{SK}, s48, s3
    s_addc_u32 s{SK+1}, s49, 0
    s_mov_b32 s{SK+2}, 0x80000
    s_mov_b32 s{SK+3}, 0x20000
    s_add_u32 s{SV}, s50, s3
    s_addc_u32 s{SV+1}, s51, 0
    s_mov_b32 s{SV+2}, 0x80000
    s_mov_b32 s{SV+3}, 0x20000
    v_and_b32 v{T0}, 31, v0
    v_lshlrev_b32 v{T0}, 8, v{T0}
    v_xor_b32 v{T1}, v{HI}, v{L16}
    v_lshl_add_u32 v{VK}, v{T1}, 4, v{T0}
    """)
    for t in range(1, 8):
        A(f"v_xor_b32 v{VK+t}, {t << 5}, v{VK}")
    A(f"""
    v_lshl_add_u32 v{T0}, v{HI}, 2, v{R4}         ; 4hi + r4
    v_lshlrev_b32 v{T1}, 8, v{T0}
    v_lshl_add_u32 v{T1}, v{G2}, 5, v{T1}
    v_lshl_add_u32 v{T1}, v{C}, 3, v{T1}
    v_add_u32 v{T1}, {LDS_V}, v{T1}
    """)
    for dt in range(4):
        A(f"v_xor_b32 v1, {dt}, v{R4}")
        A(f"v_lshl_add_u32 v{VV+dt}, v1, 6, v{T1}")
    A(f"""
    v_lshlrev_b32 v{T1}, 8, v{G}
    v_add_u32 v{T1}, s{S_W4K}, v{T1}
    """)
    for i in range(4):
        A(f"v_add_u32 v1, {4*i}, v{G}")
        A(f"v_xor_b32 v1, v1, v{L16}")
        A(f"v_lshl_add_u32 v{VKD+i}, v1, 4, v{T1}")
    A(f"""
    v_lshlrev_b32 v1, 2, v{G}
    v_xor_b32 v1, v1, v{L16}
    v_lshl_add_u32 v{VVD}, v1, 4, v{T1}
    v_lshlrev_b32 v{T1}, 7, v{T0}
    v_lshl_add_u32 v{T1}, v{G2}, 5, v{T1}
    v_lshrrev_b32 v1, 1, v{R4}              ; r4>>1
    v_lshl_add_u32 v41, v1, 6, v{T1}        ; ct=0
    v_xor_b32 v1, 1, v1
    v_lshl_add_u32 v42, v1, 6, v{T1}        ; ct=1
    v_lshlrev_b32 v43, 3, v{C}              ; c*8
    v_add_u32 v43, {LDS_V}, v43
    v_add_u32 v{WR1}, v41, v43
    v_add_u32 v{WR1+1}, v42, v43
    v_and_b32 v1, 1, v{C}
    v_lshlrev_b32 v1, 1, v1
    v_lshrrev_b32 v43, 1, v{C}
    v_or_b32 v1, v1, v43                    ; sigma(c)
    v_lshlrev_b32 v43, 3, v1
    v_add_u32 v{WRL}, v41, v43
    v_add_u32 v{WRL+1}, v42, v43
    v_add_u32 v{WRH}, 98304, v{WRL}
    v_add_u32 v{WRH+1}, 98304, v{WRL+1}
    """)
    for _ in range(36): emit_vm(q1.pop(0))

    def wfrag(n, f):
        return WF + (n % 2) * 16 + f * 4 if n < 32 else WF + (n % 4) * 8 + f * 4
    def w_reads(n):
        ks = n % 32; st, kk = divmod(ks, 4)
        out = []
        for f in range(4 if n < 32 else 2):
            if n < 32 and f < 2: reg = WR1 + f; imm = (unit("w1", st) - 8) * 8192
            elif n < 32: reg = WRL + f - 2; imm = unit("ql", st) * 8192
            else: reg = WRH + f; imm = (unit("qh", st) - 12) * 8192
            for e2 in range(2):
                out.append((f"ds_read_b64_tr_b16 {v(wfrag(n, f) + 2*e2, 2)}, v{reg} offset:{imm + (16*kk + 8*e2) * 128}", ("w", n, f)))
        return out
    ACC = [32, 96, 160]
    def acc(p, ct, qt): return ACC[p] + (ct * 2 + qt) * 16
    fill = []
    def add_silu():
        for ct in range(2):
            for qt in range(2):
                for tp in range(2):
                    base = acc(0, ct, qt) + 8 * tp
                    for j in range(4):
                        x0, x1 = base + 2*j, base + 2*j + 1
                        ta, tb = (20, 21) if j % 2 == 0 else (22, 23)
                        fill.extend([
                            (f"v_mul_f32 v{ta}, s{S_NLOG2E}, v{x0}", 4),
                            (f"v_mul_f32 v{tb}, s{S_NLOG2E}, v{x1}", 4),
                            (f"v_exp_f32 v{ta}, v{ta}", 8),
                            (f"v_exp_f32 v{tb}, v{tb}", 8),
                            (f"v_add_f32 v{ta}, 1.0, v{ta}", 4),
                            (f"v_add_f32 v{tb}, 1.0, v{tb}", 4),
                            (f"v_rcp_f32 v{ta}, v{ta}", 8),
                            (f"v_rcp_f32 v{tb}, v{tb}", 8),
                            (f"v_mul_f32 v{x0}, v{x0}, v{ta}", 4),
                            (f"v_mul_f32 v{x1}, v{x1}, v{tb}", 4),
                            (f"v_cvt_pk_bf16_f32 v{base + j}, v{x0}, v{x1}", 4),
                        ])
                    fill.append(("HSTORE", base, ct, qt, tp))
    def add_qepi(p):
        half = p - 1
        for ct in range(2):
            for qt in range(2):
                for tp in range(2):
                    base = acc(p, ct, qt) + 8 * tp
                    t = half * 4 + ct * 2 + tp
                    for j in range(4):
                        x0, x1 = base + 2*j, base + 2*j + 1
                        fill.extend([
                            (f"v_mul_f32 v{x0}, s{S_SCALE}, v{x0}", 4),
                            (f"v_mul_f32 v{x1}, s{S_SCALE}, v{x1}", 4),
                            (f"v_cvt_pk_bf16_f32 v{QF + qt*32 + t*4 + j}, v{x0}, v{x1}", 4),
                        ])
    def pop_fill(budget):
        while fill and budget > 0:
            f = fill[0]
            if f[0] == "HSTORE":
                fill.pop(0)
                _, base, ct, qt, tp = f
                A(f"s_mov_b32 s{S_T1}, {qt * 114688}")
                vm.issue(f"buffer_store_dwordx4 {v(base, 4)}, v{VL16}, s[{SH}:{SH+3}], s{S_T1} offen offset:{(2*ct + tp) * 1024}{SC1}", ("h", 0))
                budget -= 12
                continue
            if f[1] > budget + 2: break
            fill.pop(0)
            A(f[0]); budget -= f[1]

    syncs = {}
    for st in range(1, 8): syncs[4*st - 1] = [("w1", st), ("ql", st), ("xn", st)]
    syncs[30] = [("qh", j) for j in range(4)]
    syncs[32] = []
    syncs[46] = [("qh", j) for j in range(4, 8)]
    vq = q1
    vm.wait([("w1", 0), ("ql", 0), ("xn", 0)])
    A("s_barrier")
    stamp()
    for (t, tag) in w_reads(0): ds.issue(t, tag)
    late_k = False
    for n in range(64):
        phA = n < 32
        ks = n % 32
        if n == 32: stamp()
        if n in syncs:
            assert not any(g[2] in syncs[n] for g in vq), (n, syncs[n])
            if syncs[n]: vm.wait(syncs[n])
            A("s_barrier")
        if n == 19:
            for st in range(4, 8): vq += w_dma("qh", st)
        if n == 32:
            assert not vq, vq
            vq += kv_dma("v", 0) + kv_dma("v", 1) + kv_dma("k", 0)
        if n == 33:
            add_silu(); add_qepi(1)
        if n > 33 and not late_k and not any(f[0] == "HSTORE" for f in fill):
            late_k = True
            vq += kv_dma("k", 1) + kv_dma("k", 2)
        if n < 31: rd = w_reads(n + 1)
        elif n == 31: rd = w_reads(32) + w_reads(33)
        elif n + 2 < 64: rd = w_reads(n + 2)
        else: rd = []
        i = 0
        for f in range(4 if phA else 2):
            w = ds.wait(("w", n, f))
            if w: A(w)
            p, ct = (divmod(f, 2) if phA else (2, f))
            for qt in range(2):
                d = v(acc(p, ct, qt), 16)
                A(mfma(d, v(wfrag(n, f), 4), a(qt*128 + ks*4, 4), "0" if ks == 0 else d))
                if rd:
                    t, tag = rd.pop(0); ds.issue(t, tag)
                budget = opt.get("fbud", 20)
                if vq and vm.outstanding() < 62 and i % 2 == 0:
                    emit_vm(vq.pop(0)); budget -= 10
                pop_fill(budget)
                i += 1
        assert not rd
    assert late_k
    while vq: emit_vm(vq.pop(0))
    while fill: pop_fill(1000)
    A.nop(12)
    add_qepi(2)
    while fill: pop_fill(1000)

    tail_setup = []
    def ts(txt):
        tail_setup.append([l.strip() for l in txt.strip().split("\n") if l.strip()])
    ts(f"""
    s_mul_i32 s{S_RING}, s{S_W}, {RINGB}
    s_lshl_b32 s{S_T0}, s{S_NB}, 7
    s_mul_i32 s3, s{S_W}, {NF * 16384}
    s_add_u32 s3, s3, s{S_T0}
    s_add_u32 s{SW2}, s{S_PW2}, s3
    s_addc_u32 s{SW2+1}, s{S_PW2+1}, 0
    s_sub_u32 s{SW2+2}, {1792 * 1024}, s3
    s_mov_b32 s{SW2+3}, 0x20000
    s_mul_i32 s3, s{S_W}, {NS * 16384}
    s_add_u32 s3, s3, s{S_T0}
    s_add_u32 s{SWO}, s{S_PWO}, s3
    s_addc_u32 s{SWO+1}, s{S_PWO+1}, 0
    s_sub_u32 s{SWO+2}, {4096 * 1024}, s3
    s_mov_b32 s{SWO+3}, 0x20000
    """)
    ts(f"""
    s_mul_i32 s3, s{S_QT}, {2 * 114688}
    s_mul_i32 s{S_T1}, s{S_W}, {NF * 1024}
    s_add_u32 s3, s3, s{S_T1}
    s_add_u32 s3, s3, {H_OFF}
    s_add_u32 s{SHB}, s56, s3
    s_addc_u32 s{SHB+1}, s57, 0
    s_sub_u32 s{SHB+2}, {2 * 114688}, s{S_T1}
    s_mov_b32 s{SHB+3}, 0x20000
    s_lshl_b32 s3, s{S_QT}, 19
    s_lshl_b32 s{S_T1}, s{S_W}, 16
    s_add_u32 s3, s3, s{S_T1}
    s_add_u32 s3, s3, {O_OFF}
    s_add_u32 s{SOB}, s56, s3
    s_addc_u32 s{SOB+1}, s57, 0
    s_sub_u32 s{SOB+2}, {2 * 262144}, s{S_T1}
    s_mov_b32 s{SOB+3}, 0x20000
    """)
    ts(f"""
    s_lshl_b32 s3, s{S_QT}, 16
    s_add_u32 s3, s3, s{S_T0}
    s_add_u32 s{SX}, s{S_PX}, s3
    s_addc_u32 s{SX+1}, s{S_PX+1}, 0
    s_sub_u32 s{SX+2}, {2048 * 1024}, s3
    s_mov_b32 s{SX+3}, 0x20000
    s_add_u32 s{SOUT}, s{S_POUT}, s3
    s_addc_u32 s{SOUT+1}, s{S_POUT+1}, 0
    s_sub_u32 s{SOUT+2}, {2048 * 1024}, s3
    s_mov_b32 s{SOUT+3}, 0x20000
    s_and_b32 s3, s{S_W}, 1
    s_mul_i32 s{S_HQ}, s3, 114688
    s_sub_u32 s{S_HQ+1}, 114688, s{S_HQ}
    s_lshl_b32 s{S_OQ}, s3, 18
    s_sub_u32 s{S_OQ+1}, 262144, s{S_OQ}
    """)
    ts(f"""
    v_lshrrev_b32 v24, 4, v{VL16}
    v_lshrrev_b32 v25, 5, v24
    v_bfe_u32 v26, v24, 4, 1
    v_bfe_u32 v27, v24, 2, 2
    v_and_b32 v28, 3, v24
    v_lshrrev_b32 v29, 3, v24
    v_and_b32 v30, 7, v24
    v_lshlrev_b32 v31, 2, v26
    v_xor_b32 v30, v30, v31
    v_lshlrev_b32 v30, 4, v30
    v_lshl_add_u32 v{TWD0}, v29, 10, v30
    v_add_u32 v{TWD1}, {8192 - 1024}, v{TWD0}
    """)
    ts(f"""
    v_lshl_add_u32 v29, v25, 2, v27
    v_lshlrev_b32 v29, 7, v29
    v_lshl_add_u32 v29, v26, 5, v29
    v_add_u32 v29, s{S_RING}, v29
    v_and_b32 v30, 1, v28
    v_lshlrev_b32 v30, 1, v30
    v_lshrrev_b32 v31, 1, v28
    v_or_b32 v30, v30, v31
    v_lshl_add_u32 v29, v30, 3, v29
    v_lshrrev_b32 v30, 1, v27
    s_lshr_b32 s3, s{S_W}, 1
    v_xor_b32 v30, s3, v30
    v_lshl_add_u32 v{TWR0}, v30, 6, v29
    v_xor_b32 v30, 1, v30
    v_lshl_add_u32 v{TWR1}, v30, 6, v29
    """)
    ts(f"""
    v_and_b32 v29, 31, v24
    s_and_b32 s3, s{S_W}, 1
    s_lshl_b32 s3, s3, 5
    v_add_u32 v29, s3, v29
    v_lshlrev_b32 v29, 10, v29
    v_lshl_add_u32 v29, v25, 4, v29
    s_lshr_b32 s3, s{S_W}, 1
    s_lshl_b32 s3, s3, 6
    v_add_u32 v{TXA}, s3, v29
    s_mul_i32 s3, s{S_W}, {3 * 4096}
    s_add_u32 s3, s3, {LDS_EX}
    v_add_u32 v{TFR}, s3, v{VL16}
    v_add_u32 v{TSW}, s{S_RING}, v{VL16}
    """)
    x = ""
    for j in (1, 2, 3):
        x += f"""
        s_xor_b32 s3, s{S_W}, {j}
        s_mul_i32 s{S_T1}, s3, {3 * 4096}
        s_add_u32 s{S_T1}, s{S_T1}, {LDS_EX + (j - 1) * 4096}
        v_add_u32 v{TFW + j - 1}, s{S_T1}, v{VL16}
        s_mul_i32 s{S_T1}, s3, {RINGB}
        s_add_u32 s{S_T1}, s{S_T1}, {(j - 1) * 4096}
        v_add_u32 v{TSR + j - 1}, s{S_T1}, v{VL16}
        """
    ts(x)
    ts(f"""
    s_lshr_b32 s3, s{S_QT}, 2
    s_lshl_b32 s{S_T1}, s3, 2
    v_mov_b32 v{THP}, s{S_T1}
    s_lshl_b32 s{S_T1}, s3, 4
    s_add_u32 s{S_T1}, s{S_T1}, 128
    v_mov_b32 v{TOP}, s{S_T1}
    s_lshl_b32 s{S_T1}, s{S_QB}, 4
    s_add_u32 s{S_T1}, s{S_T1}, 128
    v_mov_b32 v{TOWN}, s{S_T1}
    """)
    assert len(tail_setup) == 8

    def kread(slot, sub, t, ring):
        return (f"ds_read_b128 {a(AK + 4*ring, 4)}, v{VK+t} offset:{slot*16384 + sub*8192}")
    def vread(slot, sub, g, ring):
        u, dt = divmod(g, 4)
        o = slot*16384 + sub*8192 + u*4096
        return [f"ds_read_b64_tr_b16 {a(AV + 4*ring, 2)}, v{VV+dt} offset:{o}",
                f"ds_read_b64_tr_b16 {a(AV + 4*ring + 2, 2)}, v{VV+dt} offset:{o + 2048}"]
    state = {"pend": [], "dma": [], "uid": 0, "track": False}
    def reads_for(desc, g):
        uid, qk, pv = desc
        out = []
        if qk: out.append((kread(qk[0], qk[1], g, g % 4), ("k", uid, g)))
        if pv:
            r = vread(pv[0], pv[1], g, g % 4)
            out += [(r[0], ("v", uid, g)), (r[1], ("v", uid, g))]
        return out
    def mkdesc(qk, pv):
        state["uid"] += 1
        return (state["uid"], qk, pv)

    def step(desc, nxt, par, sm, cneg=True, first_pv=False, sync=None, extra=None, dma_every=False):
        uid, qk, pv = desc
        Sq = S0 + (1 - par) * 32
        Ss = S0 + par * 32
        Pw = P0 + par * 16
        Pr = P0 + (1 - par) * 16
        extra = list(extra or [])
        for g in range(8):
            tags = []
            if qk: tags.append(("k", uid, g))
            if pv: tags.append(("v", uid, g))
            w = None
            for t in tags:
                x = ds.wait(t)
                if x: w = x
            if w: A(w)
            mf = []
            if qk:
                for qt in range(2):
                    d = v(Sq + qt*16, 16)
                    c = d if g > 0 else (v(NEGM + qt*16, 16) if cneg else "0")
                    mf.append(mfma(d, a(AK + 4*(g % 4), 4), v(QF + qt*32 + g*4, 4), c))
            if pv:
                u, dt = divmod(g, 4)
                for qt in range(2):
                    d = a(AO + qt*64 + dt*16, 16)
                    c = "0" if (first_pv and u == 0) else d
                    mf.append(mfma(d, a(AV + 4*(g % 4), 4), v(Pr + qt*8 + u*4, 4), c))
            rd = reads_for(desc, g + 2) if g < 6 else (reads_for(nxt, g - 6) if nxt else [])
            ng = len(mf)
            pre_sync = (g == 6 and sync is not None)
            if sm:
                qt, k4 = divmod(g, 4)
                r = [Ss + qt*16 + 4*k4 + i for i in range(4)]
                l = LA if qt == 0 else LB
                pw = Pw + qt*8 + 2*k4
                ex = [f"v_exp_f32 v{x}, v{x}" for x in r]
                newpend = [f"v_add_f32 v{l}, v{l}, v{r[3]}", f"v_cvt_pk_bf16_f32 v{pw+1}, v{r[2]}, v{r[3]}"]
            else:
                ex = []; newpend = []
            pend = state["pend"]
            if ng == 4:
                G = [[], [], [], []]
                if sm:
                    G[0] = [ex[0]]; G[1] = [ex[1]]; G[2] = [ex[2]]; G[3] = [ex[3]]
                for i, (t, tag) in enumerate(rd): G[min(i, 2)].append(("ds", t, tag))
                G[0] += pend
                if sm:
                    G[1].append(f"v_add_f32 v{l}, v{l}, v{r[0]}")
                    G[2].append(f"v_add_f32 v{l}, v{l}, v{r[1]}")
                    G[2].append(f"v_cvt_pk_bf16_f32 v{pw}, v{r[0]}, v{r[1]}")
                    G[3].append(f"v_add_f32 v{l}, v{l}, v{r[2]}")
            else:
                G = [[], []]
                if sm:
                    G[0] = [ex[0], ex[1]]; G[1] = [ex[2], ex[3]]
                for i, (t, tag) in enumerate(rd): G[min(i, 1)].append(("ds", t, tag))
                G[0] += pend
                if sm:
                    G[0].append(f"v_add_f32 v{l}, v{l}, v{r[0]}")
                    G[1].append(f"v_add_f32 v{l}, v{l}, v{r[1]}")
                    G[1].append(f"v_cvt_pk_bf16_f32 v{pw}, v{r[0]}, v{r[1]}")
                    G[1].append(f"v_add_f32 v{l}, v{l}, v{r[2]}")
            state["pend"] = newpend
            for i, m in enumerate(mf):
                A(m)
                if i == 0 and pre_sync:
                    sync()
                for x in G[i]:
                    if isinstance(x, tuple): ds.issue(x[1], x[2])
                    else: A(x)
                if state["dma"] and (i % 2 == 1 or ng == 2 or dma_every):
                    grp = state["dma"].pop(0)
                    if state["track"]: emit_vm(grp)
                    else:
                        pre, ins, tag = grp
                        for pp in pre: A(pp)
                        if pre and "m0" in pre[-1]: A.nop(1)
                        A(ins)
                if extra and i == ng - 1:
                    for x in extra.pop(0): A(x)
        assert not extra

    def issue_next(s):
        assert not state["dma"]
        k = kv_dma("k", s + 3, S_KOFF)
        x = kv_dma("v", s + 2, S_VOFF)
        k[0] = ([f"s_add_u32 s{S_KOFF}, s{S_KOFF}, 16384", f"s_add_u32 s{S_VOFF}, s{S_VOFF}, 16384"] + k[0][0], k[0][1], k[0][2])
        state["dma"] = k + x
    def sync_fn(cnt, s, issue=True, post=None):
        def f():
            if callable(cnt): cnt()
            else: A(f"s_waitcnt vmcnt({cnt})")
            A("s_barrier")
            if post: post()
            if issue: issue_next(s)
        return f
    uniq = [0]
    def one_lane_atomic(voff, guard_mode):
        uniq[0] += 1
        lab = f"atom_skip{uniq[0]}"
        A(f"s_cmp_lg_u32 s{S_W}, 0")
        A(f"s_cbranch_scc1 {lab}")
        if guard_mode:
            A(f"s_cmp_lg_u32 s{S_MODE}, 0")
            A(f"s_cbranch_scc1 {lab}")
        A("v_mov_b32 v25, 1")
        A("s_mov_b64 exec, 1")
        A(f"global_atomic_add v{voff}, v25, s[{S_DBG}:{S_DBG+1}]")
        A("s_mov_b64 exec, -1")
        A.label(lab)
    def spin(voff, name, have_first):
        A(f"s_mov_b32 s{S_SPIN}, 0x10000")
        if have_first:
            A("v_readfirstlane_b32 s3, v24")
            A("s_nop 3")
            A("s_cmp_ge_u32 s3, 32")
            A(f"s_cbranch_scc1 {name}_ok")
        A.label(f"{name}_loop")
        A(f"global_load_dword v24, v{voff}, s[{S_DBG}:{S_DBG+1}] sc1")
        A("s_waitcnt vmcnt(0)")
        A("v_readfirstlane_b32 s3, v24")
        A("s_nop 3")
        A("s_cmp_ge_u32 s3, 32")
        A(f"s_cbranch_scc1 {name}_ok")
        A(f"s_sub_u32 s{S_SPIN}, s{S_SPIN}, 1")
        A(f"s_cbranch_scc1 {name}_ok")
        A("s_sleep 2")
        A(f"s_branch {name}_loop")
        A.label(f"{name}_ok")

    stamp()
    A.label("attn_go")
    vm.wait([("k", 0)])
    A(f"""
    s_barrier
    s_mov_b32 s{S_KOFF}, {2*16384}
    s_mov_b32 s{S_VOFF}, {1*16384}
    v_mov_b32 v{LA}, 0
    v_mov_b32 v{LB}, 0
    """)
    d_m1 = mkdesc((0, 0), None)
    d_0 = mkdesc((0, 1), None)
    for g in (0, 1):
        for (t, tag) in reads_for(d_m1, g): ds.issue(t, tag)
    step(d_m1, d_0, par=1, sm=False, cneg=False, extra=tail_setup)
    A.nop(12)
    A(f"s_cmp_lg_u32 s{S_MODE}, 0")
    A("s_cbranch_scc1 attn_have_max")
    for qt in range(2):
        b = S0 + qt*16; m = 24 + qt
        A(f"v_max3_f32 v{m}, v{b}, v{b+1}, v{b+2}")
        for i in range(3, 15, 2):
            A(f"v_max3_f32 v{m}, v{m}, v{b+i}, v{b+i+1}")
        A(f"v_max_f32 v{m}, v{m}, v{b+15}")
    for qt in range(2):
        A(f"v_mov_b32 v{26+qt}, v{24+qt}")
    A.nop(2)
    for qt in range(2):
        A(f"v_permlane32_swap_b32 v{24+qt}, v{26+qt}")
    A.nop(1)
    for qt in range(2):
        A(f"v_max_f32 v{24+qt}, v{24+qt}, v{26+qt}")
        A(f"v_add_f32 v{24+qt}, {fhex(float(opt.get('off', 96)))}, v{24+qt}")
    for qt in range(2):
        for i in range(16):
            A(f"v_sub_f32 v{NEGM + qt*16 + i}, 0, v{24+qt}")
    A.label("attn_have_max")
    for qt in range(2):
        for i in range(16):
            A(f"v_add_f32 v{S0 + qt*16 + i}, v{S0 + qt*16 + i}, v{NEGM + qt*16 + i}")
    A.nop(2)
    def mac(s):
        ks, vs = (s + 1) % 4, s % 4
        last = (s == 31)
        return (mkdesc(None if last else (ks, 0), (vs, 0)), mkdesc(None if last else (ks, 1), (vs, 1)))
    m0 = mac(0)
    def post0():
        A(f"s_lshl_b32 s3, s{S_QB}, 2")
        A("v_mov_b32 v24, s3")
        one_lane_atomic(24, guard_mode=True)
    assert vm.count_after([("h", 0)]) >= vm.count_after([("k", 1)])
    step(d_0, m0[0], par=0, sm=True, sync=sync_fn(lambda: vm.wait([("k", 1), ("v", 0)]), 0, post=post0))
    def macro(m, mnext, s, first=False, sync=None, dma_every=False):
        step(m[0], m[1], par=1, sm=True, first_pv=first, dma_every=dma_every)
        step(m[1], mnext[0], par=0, sm=True, sync=sync, dma_every=dma_every)
    m1 = mac(1)
    macro(m0, m1, 0, first=True, sync=sync_fn(8, 1))
    stamp()
    A(f"s_mov_b32 s{S_CNT}, 7")
    entry_pend = [t[0] for t in ds.pending()]
    entry_state = (list(state["pend"]), [x[1] for x in state["dma"]])
    A.label("attn_loop")
    loop_start = len(A.L)
    ms = [m1] + [mac(s) for s in (2, 3, 4, 5)]
    for i in range(4):
        macro(ms[i], ms[i+1], 1 + i, sync=sync_fn(8, 2 + i))
    assert [t[0] for t in ds.pending()] == entry_pend
    assert entry_state == (list(state["pend"]), [x[1] for x in state["dma"]]), (entry_state, state)
    A(f"s_sub_u32 s{S_CNT}, s{S_CNT}, 1")
    A(f"s_cmp_lg_u32 s{S_CNT}, 0")
    A("s_cbranch_scc1 attn_loop")
    loop_end = len(A.L)
    stamp()

    def t_loads(n, want="wb"):
        f = n < NF
        ks = n if f else n - NF
        sw = SW2 if f else SWO
        sb = SHB if f else SOB
        sq = S_HQ if f else S_OQ
        slot = n % RING
        g = []
        if "w" in want:
            g.append(([f"s_add_u32 m0, s{S_RING}, {slot * 2048}", f"s_mov_b32 s{S_T0}, {ks * 16384}"],
                      f"buffer_load_dwordx4 v{TWD0}, s[{sw}:{sw+3}], s{S_T0} offen lds", ("w", n)))
            g.append(([], f"buffer_load_dwordx4 v{TWD1}, s[{sw}:{sw+3}], s{S_T0} offen offset:1024 lds", ("w", n)))
        if "b" in want:
            for qs in range(2):
                g.append(([f"s_add_u32 s{S_T1}, s{sq + qs}, {ks * 1024}"],
                          f"buffer_load_dwordx4 {a(AB + slot * 8 + qs * 4, 4)}, v{VL16}, s[{sb}:{sb+3}], s{S_T1} offen{SC1}", ("b", n)))
        return g
    def t_frag(n, cs): return TWF + (n % 3) * 8 + cs * 4
    def t_reads(n):
        slot = n % RING
        out = []
        for cs in range(2):
            for e2 in range(2):
                out.append((f"ds_read_b64_tr_b16 {v(t_frag(n, cs) + 2*e2, 2)}, v{TWR0 + cs} offset:{slot * 2048 + e2 * 1024}", ("tw", n)))
        return out

    m29 = ms[4]; m30 = mac(30); m31 = mac(31)
    def post30():
        A(f"global_load_dword v24, v{THP}, s[{S_DBG}:{S_DBG+1}] sc1")
    macro(m29, m30, 29, sync=sync_fn(8, 30, issue=False, post=post30))
    def post31():
        spin(THP, "hwait", have_first=True)
        vm.ops = []; vm.retired = 0
        state["track"] = True
        assert not state["dma"]
        for n in range(DEPTH): state["dma"] += t_loads(n)
    def pre31():
        A("s_waitcnt vmcnt(0)")
        A(ds.waitall())
    macro(m30, m31, 30, sync=sync_fn(pre31, 31, issue=False, post=post31), dma_every=False)
    step(m31[0], m31[1], par=1, sm=True)
    step(m31[1], None, par=0, sm=False)
    assert not state["pend"]
    while state["dma"]: emit_vm(state["dma"].pop(0))
    state["track"] = False
    stamp()
    for (l, t) in ((LA, 21), (LB, 23)):
        A(f"v_mov_b32 v{t}, v{l}")
    A.nop(2)
    for (l, t) in ((LA, 21), (LB, 23)):
        A(f"v_permlane32_swap_b32 v{l}, v{t}")
    A.nop(1)
    for (l, t) in ((LA, 21), (LB, 23)):
        A(f"v_add_f32 v{l}, v{l}, v{t}")
    A(f"""
    v_mov_b32 v1, 0x4e800000                 ; 2^30
    v_cmp_nlt_f32 vcc, v{LA}, v1
    v_cmp_nlt_f32 s[44:45], v{LB}, v1
    v_rcp_f32 v{LA}, v{LA}
    v_rcp_f32 v{LB}, v{LB}
    s_or_b64 s[44:45], vcc, s[44:45]
    v_mov_b32 v26, 0
    v_mov_b32 v27, 0
    """)
    nst = 0
    for qt in range(2):
        l = LA if qt == 0 else LB
        for dt in range(4):
            for tp in range(2):
                src = AO + qt*64 + dt*16 + tp*8
                tmp = NEGM + (nst % 4) * 8
                pk = P0 + (nst % 4) * 4
                nst += 1
                for i in range(8): A(f"v_accvgpr_read_b32 v{tmp+i}, a{src+i}")
                for i in range(0, 8, 2): A(f"v_max3_f32 v{26+qt}, |v{tmp+i}|, |v{tmp+i+1}|, v{26+qt}")
                for i in range(8): A(f"v_mul_f32 v{tmp+i}, v{tmp+i}, v{l}")
                for j in range(4): A(f"v_cvt_pk_bf16_f32 v{pk+j}, v{tmp+2*j}, v{tmp+2*j+1}")
                k = 2*dt + tp
                so = qt * 262144 + (k // 4) * 4096
                A(f"s_mov_b32 s3, {so}")
                vm.issue(f"buffer_store_dwordx4 {v(pk, 4)}, v{VL16}, s[{SO}:{SO+3}], s3 offen offset:{(k % 4) * 1024}{SC1}", ("ost", 0))
    A(f"""
    v_min_f32 v26, v26, v27
    v_mov_b32 v1, 0x0d800000                 ; 2^-100
    v_cmp_lt_f32 vcc, v26, v1
    s_nop 1
    s_or_b64 vcc, vcc, s[44:45]
    s_cmp_lg_u64 vcc, 0
    s_cselect_b32 s3, 1, 0
    s_andn2_b32 s3, s3, s{S_MODE}
    v_mov_b32 v24, s3
    v_mov_b32 v25, s{S_W}
    v_lshlrev_b32 v25, 2, v25
    v_add_u32 v25, {LDS_VOTE}, v25
    """)
    ds.issue("ds_write_b32 v25, v24", ("vote_w", 0))
    A(f"v_mov_b32 v25, {LDS_VOTE}")
    stamp()
    vm.wait([("w", 1)])
    for n in (0, 1):
        for (t, tag) in t_reads(n): ds.issue(t, tag)
    FB = opt.get("fb", 9)
    def t_step(n):
        f = n < NF
        ks = n if f else n - NF
        accb = ACCF if f else ACCS
        tags = [("b", n)]
        if n + 2 < NK: tags.append(("w", n + 2))
        if n == FB: tags.append(("ost", 0))
        vm.wait(tags)
        if n == FB:
            x = ds.wait(("vote_w", 0))
            if x: A(x)
            A("s_barrier")
            ds.issue("ds_read_b128 v[28:31], v25", ("vote_r", 0))
        if n == FB + 1:
            x = ds.wait(("vote_r", 0))
            if x: A(x)
            A("""
            v_or3_b32 v28, v28, v29, v30
            v_or_b32 v28, v28, v31
            s_nop 0
            v_readfirstlane_b32 s3, v28
            s_nop 3
            s_cmp_lg_u32 s3, 0
            s_cbranch_scc1 attn_fallback
            """)
            one_lane_atomic(TOWN, guard_mode=False)
        w = ds.wait(("tw", n))
        if w: A(w)
        rd = t_reads(n + 2) if n + 2 < NK else []
        m = n + DEPTH
        if m >= NK: ld = []
        elif f and m >= NF: ld = t_loads(m, "w")
        else: ld = t_loads(m)
        if m == NK:
            ld = [([], f"buffer_load_dwordx4 {v(160, 4)}, v{TXA}, s[{SX}:{SX+3}], 0 offen", ("x", 0)),
                  ([], f"buffer_load_dwordx4 {v(164, 4)}, v{TXA}, s[{SX}:{SX+3}], 0 offen offset:32", ("x", 0))]
        for cs in range(2):
            for qs in range(2):
                d = v(accb + (cs * 2 + qs) * 16, 16)
                A(mfma(d, v(t_frag(n, cs), 4), a(AB + (n % RING) * 8 + qs * 4, 4), "0" if ks == 0 else d))
                if rd:
                    t, tag = rd.pop(0); ds.issue(t, tag)
                if ld: emit_vm(ld.pop(0))
        assert not ld and not rd
    for n in range(NF): t_step(n)
    stamp()
    A.nop(12)
    for j in (1, 2, 3):
        for q in range(4):
            ds.issue(f"ds_write_b128 v{TFW + j - 1}, {v(ACCF + 16*j + 4*q, 4)} offset:{q * 1024}", ("fw", 0))
    A(ds.waitall())
    A(f"s_cmp_lg_u32 s{S_W}, 0")
    A("s_cbranch_scc1 owait_ok")
    spin(TOP, "owait", have_first=False)
    A("s_barrier")
    stamp()
    for n in range(NF, NF + DEPTH):
        for g in t_loads(n, "b"): emit_vm(g)
    for j in range(3):
        for q in range(4):
            ds.issue(f"ds_read_b128 {v(160 + 16*j + 4*q, 4)}, v{TFR} offset:{j * 4096 + q * 1024}", ("fr", j))
    A(ds.wait(("fr", 0)))
    for i in range(16): A(f"v_add_f32 v{ACCF+i}, v{ACCF+i}, v{160+i}")
    A(ds.wait(("fr", 2)))
    for i in range(16): A(f"v_add_f32 v{176+i}, v{176+i}, v{192+i}")
    for i in range(16): A(f"v_add_f32 v{ACCF+i}, v{ACCF+i}, v{176+i}")
    for i in range(16): A(f"v_mul_f32 v{160+i}, s{S_NLOG2E}, v{ACCF+i}")
    for i in range(16): A(f"v_exp_f32 v{160+i}, v{160+i}")
    for i in range(16): A(f"v_add_f32 v{160+i}, 1.0, v{160+i}")
    for i in range(16): A(f"v_rcp_f32 v{160+i}, v{160+i}")
    for i in range(16): A(f"v_mul_f32 v{ACCF+i}, v{ACCF+i}, v{160+i}")
    for n in range(NF, NK): t_step(n)
    stamp()
    A.nop(12)
    for j in (1, 2, 3):
        for q in range(4):
            ds.issue(f"ds_write_b128 v{TSW}, {v(ACCS + 16*j + 4*q, 4)} offset:{(j - 1) * 4096 + q * 1024}", ("sw", 0))
    A(ds.waitall())
    A("s_barrier")
    for j in range(3):
        for q in range(4):
            ds.issue(f"ds_read_b128 {v(112 + 16*j + 4*q, 4)}, v{TSR + j} offset:{q * 1024}", ("sr", j))
    vm.wait([("x", 0)])
    for i in range(8):
        A(f"v_lshlrev_b32 v{168+2*i}, 16, v{160+i}")
        A(f"v_and_b32 v{169+2*i}, 0xffff0000, v{160+i}")
    A(ds.wait(("sr", 0)))
    for i in range(16): A(f"v_add_f32 v{ACCS+i}, v{ACCS+i}, v{112+i}")
    A(ds.wait(("sr", 2)))
    for i in range(16): A(f"v_add_f32 v{128+i}, v{128+i}, v{144+i}")
    for i in range(16): A(f"v_add_f32 v{ACCS+i}, v{ACCS+i}, v{128+i}")
    for i in range(16): A(f"v_fmac_f32 v{168+i}, v{ACCS+i}, v{ACCF+i}")
    for i in range(8): A(f"v_cvt_pk_bf16_f32 v{112+i}, v{168+2*i}, v{169+2*i}")
    A(f"buffer_store_dwordx4 {v(112, 4)}, v{TXA}, s[{SOUT}:{SOUT+3}], 0 offen")
    A(f"buffer_store_dwordx4 {v(116, 4)}, v{TXA}, s[{SOUT}:{SOUT+3}], 0 offen offset:32")
    if prof:
        stamp()
        A("s_waitcnt vmcnt(0)")
        stamp()
        A(f"s_lshl_b32 s3, s2, 2")
        A(f"s_add_u32 s3, s3, s{S_W}")
        A(f"s_lshl_b32 s3, s3, 8")
        A(f"s_add_u32 s3, s3, {PROF_OFF}")
        A("s_add_u32 s56, s56, s3")
        A("s_addc_u32 s57, s57, 0")
        A("v_writelane_b32 v0, s96, 0")
        A("v_writelane_b32 v0, s97, 1")
        A(f"v_lshrrev_b32 v1, 2, v{VL16}")
        A("global_store_dword v1, v0, s[56:57]")
        print("stamps", nstamp[0])
    A("s_endpgm")
    A.label("attn_fallback")
    A(f"""
    s_waitcnt vmcnt(0) lgkmcnt(0)
    s_mov_b32 s{S_MODE}, 1
    v_mov_b32 v24, 0xff800000
    v_mov_b32 v25, 0xff800000
    s_mov_b32 s{S_KOFF}, 0
    """)
    A.label("attn_fb_loop")
    A("s_barrier")
    for grp in kv_dma("k", 0, S_KOFF):
        pre, ins, tag = grp
        for pp in pre: A(pp)
        if pre: A.nop(1)
        A(ins)
    A("s_waitcnt vmcnt(0)")
    A("s_barrier")
    for sub in range(2):
        for t in range(8):
            A(kread(0, sub, t, t % 4))
            A("s_waitcnt lgkmcnt(0)")
            for qt in range(2):
                d = v(S0 + qt*16, 16)
                A(mfma(d, a(AK + 4*(t % 4), 4), v(QF + qt*32 + t*4, 4), "0" if t == 0 else d))
        A.nop(14)
        for qt in range(2):
            b = S0 + qt*16; m = 24 + qt
            for i in range(0, 16, 2):
                A(f"v_max3_f32 v{m}, v{m}, v{b+i}, v{b+i+1}")
        A.nop(2)
    A(f"""
    s_add_u32 s{S_KOFF}, s{S_KOFF}, 16384
    s_cmp_lt_u32 s{S_KOFF}, 0x80000
    s_cbranch_scc1 attn_fb_loop
    """)
    for qt in range(2):
        A(f"v_mov_b32 v{26+qt}, v{24+qt}")
    A.nop(2)
    for qt in range(2):
        A(f"v_permlane32_swap_b32 v{24+qt}, v{26+qt}")
    A.nop(1)
    for qt in range(2):
        A(f"v_max_f32 v{24+qt}, v{24+qt}, v{26+qt}")
    for qt in range(2):
        for i in range(16):
            A(f"v_sub_f32 v{NEGM + qt*16 + i}, 0, v{24+qt}")
    A("s_barrier")
    for grp in kv_dma("v", 0) + kv_dma("v", 1) + kv_dma("k", 0) + kv_dma("k", 1) + kv_dma("k", 2):
        pre, ins, tag = grp
        for pp in pre: A(pp)
        if pre: A.nop(1)
        A(ins)
    A("s_waitcnt vmcnt(0)")
    A("s_branch attn_go")
    A.label("main_done")
    A("s_endpgm")
    check_hazards(A.L, "f")
    body = A.L[loop_start:loop_end]
    check_hazards(body + body, "floop")
    return (L, 256, 256, 163840, A.text(), 512, 256)
```

```python
import sys
from gen_common import *
from gen_k1 import gen_k1
def main():
    out = sys.argv[1]
    opt = {}
    for kv in sys.argv[2:]:
        k, x = kv.split("=")
        opt[k] = int(x) if x.lstrip("-").isdigit() else x
    mode = opt.get("mode", "f")
    if mode == "3k":
        from gen_k2 import gen_k2
        from gen_k3 import gen_k3
        ks = [gen_k1(), gen_k2(opt), gen_k3(opt)]
    else:
        from gen_f import gen_f
        ks = [gen_k1(opt), gen_f(opt)]
    open(out, "w").write(assemble_file(ks))
main()
```

```python
from gen_common import *

VK = 2
VV = 10
VKD = 14
VVD = 18
VL16 = 19
LA, LB = 20, 22
WR1, WRL, WRH = 24, 26, 28
WD1, WDQ = 30, 31
QF = 32
S0 = 96
NEGM = 160
P0 = 192
WF = 224
TWF = 208
TWD0, TWD1, TWR0, TWR1, TXA = 232, 233, 234, 235, 236
TFW, TFR, TSW, TSR = 237, 240, 241, 242
THP, TOP, TOWN = 245, 246, 247
ACCF, ACCS = 96, 32
AO = 0
AK = 128
AV = 144
AB = 160
SK, SV, SWQ, SXN, SO, SW1, SH = 4, 8, 12, 16, 20, 24, 28
SW2, SWO, SHB, SOB, SX, SOUT = 12, 16, 24, 28, 64, 68
S_HEAD, S_QB, S_W, S_W4K, S_W2K, S_KOFF, S_VOFF, S_CNT, S_T0, S_T1, S_MODE = 32, 33, 34, 35, 36, 37, 38, 39, 40, 41, 42
S_T2 = 43
S_SCALE, S_NLOG2E = 46, 47
S_DBG = 62
S_QT, S_NB, S_RING, S_HQ, S_OQ, S_SPIN = 72, 73, 74, 75, 77, 79
S_PX, S_PWO, S_PW2, S_POUT = 84, 86, 88, 90
LDS_V = 65536
LDS_EX = 98304
LDS_VOTE = 147456
NF, NS = 28, 64
NK = NF + NS
RING = 12
DEPTH = 11
RINGB = RING * 2048


class DS:
    def __init__(self, A):
        self.A = A; self.ops = []; self.retired = 0
    def issue(self, txt, tag):
        self.A(txt); self.ops.append(tag)
    def wait(self, tag):
        last = -1
        for i, t in enumerate(self.ops):
            if t == tag: last = i
        assert last >= 0, tag
        n = len(self.ops) - 1 - last
        done = last + 1
        if done <= self.retired: return None
        n = min(n, 15)
        self.retired = len(self.ops) - n
        return f"s_waitcnt lgkmcnt({n})"
    def waitall(self):
        self.retired = len(self.ops)
        return "s_waitcnt lgkmcnt(0)"
    def pending(self):
        return self.ops[self.retired:]


def mfma(d, a_, b_, c_):
    return f"v_mfma_f32_32x32x16_bf16 {d}, {a_}, {b_}, {c_}"


def gen_f(opt=None):
    opt = opt or {}
    A = Asm()
    L = opt.get("label", "main_kernel")
    kernel_head(A, L)
    ds = DS(A)
    vm = VM(A)
    prof = opt.get("prof", 0)
    SC1 = " sc1" if opt.get("sc1", 1) else ""
    nstamp = [0]
    HOFF = 64 if prof == 2 else 0
    M16 = opt.get("m16", 0)
    global VV
    VV = 6 if M16 else 10
    VVD1 = 1
    ONES = 20
    LACC = NEGM + 16
    def stamp(first=False):
        if not prof: return
        i = nstamp[0]; nstamp[0] += 1
        A("s_memtime s[58:59]")
        A("s_memrealtime s[60:61]")
        A("s_waitcnt lgkmcnt(0)")
        if first:
            A("s_mov_b32 s96, s58")
            A("s_mov_b32 s97, s60")
        else:
            A(f"v_writelane_b32 v0, s58, {2*i}")
            A(f"v_writelane_b32 v0, s60, {2*i+1}")
    A(f"""
    s_cmp_ge_u32 s2, 256
    s_cbranch_scc1 main_done
    """)
    stamp(first=True)
    A(f"""
    s_load_dwordx4 s[48:51], s[0:1], 8      ; K, V
    s_load_dwordx2 s[52:53], s[0:1], 24     ; Wq
    s_load_dwordx2 s[54:55], s[0:1], 48     ; W1
    s_load_dwordx2 s[56:57], s[0:1], 80     ; ws
    s_load_dwordx2 s[{S_DBG}:{S_DBG+1}], s[0:1], 72
    s_load_dwordx2 s[{S_PX}:{S_PX+1}], s[0:1], 0
    s_load_dwordx2 s[{S_PWO}:{S_PWO+1}], s[0:1], 32
    s_load_dwordx4 s[{S_PW2}:{S_PW2+3}], s[0:1], 56    ; W2, out
    v_lshrrev_b32 v1, 6, v0
    v_and_b32 v0, 63, v0
    s_and_b32 s3, s2, 7
    s_lshr_b32 s{S_T0}, s2, 3               ; i = 0..31
    v_readfirstlane_b32 s{S_W}, v1
    s_and_b32 s{S_NB}, s{S_T0}, 7
    s_lshr_b32 s{S_T1}, s{S_T0}, 3          ; i/8 = 0..3
    s_lshl_b32 s{S_QT}, s3, 2
    s_add_u32 s{S_QT}, s{S_QT}, s{S_T1}
    s_lshl_b32 s{S_T1}, s{S_T1}, 3
    s_add_u32 s{S_HEAD}, s{S_T1}, s3        ; head = x + 8*(i/8)
    s_and_b32 s{S_QB}, s{S_T0}, 7           ; q block
    s_lshl_b32 s{S_W4K}, s{S_W}, 12
    s_lshl_b32 s{S_W2K}, s{S_W}, 11
    s_mov_b32 s{S_SCALE}, {fhex(LOG2E * 128 ** -0.5)}
    s_mov_b32 s{S_NLOG2E}, {fhex(-LOG2E)}
    s_mov_b32 s{S_MODE}, 0
    """)
    HI, L16, G, R4, C, G2, T0, T1, T2 = 32, 33, 34, 35, 36, 37, 38, 39, 40
    A(f"""
    v_lshlrev_b32 v{VL16}, 4, v0            ; lane*16
    v_lshrrev_b32 v{HI}, 5, v0              ; hi
    v_and_b32 v{L16}, 15, v0                ; l%16
    v_lshrrev_b32 v{G}, 4, v0               ; g = l/16
    v_lshrrev_b32 v{R4}, 2, v{L16}          ; r4
    v_and_b32 v{C}, 3, v0                   ; c
    v_and_b32 v{G2}, 1, v{G}                ; g2
    ; W dma voffsets: (16w + l/8)*stride + ((l%8) ^ (g2<<2))*16
    v_lshrrev_b32 v1, 3, v0
    s_lshl_b32 s3, s{S_W}, 4
    v_add_u32 v1, s3, v1                    ; row
    v_and_b32 v{T0}, 7, v0
    v_lshlrev_b32 v{T1}, 2, v{G2}
    v_xor_b32 v{T0}, v{T0}, v{T1}
    v_lshlrev_b32 v{T0}, 4, v{T0}
    v_mul_u32_u24 v{T1}, 3584, v1
    v_add_u32 v{WD1}, v{T1}, v{T0}
    v_lshl_add_u32 v{WDQ}, v1, 13, v{T0}
    s_waitcnt lgkmcnt(0)
    """)
    A(f"""
    s_lshl_b32 s3, s{S_HEAD}, 8
    s_add_u32 s{SWQ}, s52, s3
    s_addc_u32 s{SWQ+1}, s53, 0
    s_sub_u32 s{SWQ+2}, {512*8192}, s3
    s_mov_b32 s{SWQ+3}, 0x20000
    s_min_u32 s3, s{S_HEAD}, 27
    s_lshl_b32 s3, s3, 7
    s_add_u32 s{SW1}, s54, s3
    s_addc_u32 s{SW1+1}, s55, 0
    s_sub_u32 s{SW1+2}, {512*3584}, s3
    s_mov_b32 s{SW1+3}, 0x20000
    s_lshl_b32 s{S_T0}, s{S_QB}, 3
    s_lshl_b32 s{S_T1}, s{S_W}, 1
    s_add_u32 s{S_T2}, s{S_T0}, s{S_T1}
    s_lshl_b32 s3, s{S_T2}, 15
    s_add_u32 s3, s3, {XN_OFF}
    s_add_u32 s{SXN}, s56, s3
    s_addc_u32 s{SXN+1}, s57, 0
    s_mov_b32 s{SXN+2}, 0x10000
    s_mov_b32 s{SXN+3}, 0x20000
    s_lshl_b32 s3, s{S_T2}, 18
    s_lshl_b32 s{S_T1}, s{S_HEAD}, 13
    s_add_u32 s3, s3, s{S_T1}
    s_add_u32 s3, s3, {O_OFF}
    s_add_u32 s{SO}, s56, s3
    s_addc_u32 s{SO+1}, s57, 0
    s_mov_b32 s{SO+2}, {262144 + 8192}
    s_mov_b32 s{SO+3}, 0x20000
    s_mul_i32 s3, s{S_T2}, 114688
    s_lshl_b32 s{S_T1}, s{S_HEAD}, 12
    s_add_u32 s3, s3, s{S_T1}
    s_add_u32 s3, s3, {H_OFF}
    s_add_u32 s{SH}, s56, s3
    s_addc_u32 s{SH+1}, s57, 0
    s_cmp_lt_u32 s{S_HEAD}, 28
    s_cselect_b32 s{SH+2}, {114688 + 4096}, 0
    s_mov_b32 s{SH+3}, 0x20000
    """)
    def unit(kind, st):
        if kind == "w1": return 12 + st if st < 4 else 8 + st - 4
        if kind == "ql": return 6 + st if st < 2 else st - 2
        return 16 + st if st < 4 else 12 + st - 4
    def w_dma(kind, st):
        lds = unit(kind, st) * 8192
        if kind == "w1": stride = 3584; base = st * 64 * stride; sr = SW1; vo = WD1
        else: stride = 8192; base = st * 64 * stride + (128 if kind == "qh" else 0); sr = SWQ; vo = WDQ
        g = []
        for i in range(2):
            pre = []
            if i == 0: pre.append(f"s_add_u32 m0, s{S_W2K}, {lds}")
            pre.append(f"s_mov_b32 s{S_T0}, {base + i * (8 * stride - 1024)}")
            g.append((pre, f"buffer_load_dwordx4 v{vo}, s[{sr}:{sr+3}], s{S_T0} offen offset:{i*1024} lds", (kind, st)))
        return g
    def xn_ld(st):
        g = []
        for qt in range(2):
            for kk in range(4):
                ks = st * 4 + kk
                pre = [f"s_mov_b32 s{S_T1}, {qt * 32768 + st * 4096}"] if kk == 0 else []
                g.append((pre, f"buffer_load_dwordx4 {a(qt*128 + ks*4, 4)}, v{VL16}, s[{SXN}:{SXN+3}], s{S_T1} offen offset:{kk*1024}", ("xn", st)))
        return g
    def kv_dma(kind, stage, soff=None):
        slot = stage % 4
        g = []
        lds = slot * 16384 + (LDS_V if kind == "v" else 0)
        sr = SK if kind == "k" else SV
        for i in range(4):
            pre = []
            if i == 0:
                pre.append(f"s_add_u32 m0, s{S_W4K}, {lds}")
                if soff is None:
                    pre.append(f"s_mov_b32 s{S_T2}, {stage * 16384}")
            so = S_T2 if soff is None else soff
            vo = VKD + i if kind == "k" else (VVD1 if (M16 and i % 2) else VVD)
            g.append((pre, f"buffer_load_dwordx4 v{vo}, s[{sr}:{sr+3}], s{so} offen offset:{i*1024} lds", (kind, stage)))
        return g
    def emit_vm(grp):
        pre, ins, tag = grp
        for p in pre: A(p)
        if pre and "m0" in pre[-1]: A.nop(1)
        vm.issue(ins, tag)

    q1 = []
    for st in range(8):
        q1 += w_dma("w1", st) + w_dma("ql", st) + xn_ld(st)
    for st in range(4): q1 += w_dma("qh", st)
    for _ in range(24): emit_vm(q1.pop(0))
    A(f"""
    s_lshl_b32 s3, s{S_HEAD}, 19
    s_add_u32 s{SK}, s48, s3
    s_addc_u32 s{SK+1}, s49, 0
    s_mov_b32 s{SK+2}, 0x80000
    s_mov_b32 s{SK+3}, 0x20000
    s_add_u32 s{SV}, s50, s3
    s_addc_u32 s{SV+1}, s51, 0
    s_mov_b32 s{SV+2}, 0x80000
    s_mov_b32 s{SV+3}, 0x20000
    """)
    if not M16:
        A(f"""
        v_and_b32 v{T0}, 31, v0
        v_lshlrev_b32 v{T0}, 8, v{T0}
        v_xor_b32 v{T1}, v{HI}, v{L16}
        v_lshl_add_u32 v{VK}, v{T1}, 4, v{T0}
        """)
        for t in range(1, 8):
            A(f"v_xor_b32 v{VK+t}, {t << 5}, v{VK}")
        A(f"""
        v_lshl_add_u32 v{T0}, v{HI}, 2, v{R4}         ; 4hi + r4
        v_lshlrev_b32 v{T1}, 8, v{T0}
        v_lshl_add_u32 v{T1}, v{G2}, 5, v{T1}
        v_lshl_add_u32 v{T1}, v{C}, 3, v{T1}
        v_add_u32 v{T1}, {LDS_V}, v{T1}
        """)
        for dt in range(4):
            A(f"v_xor_b32 v1, {dt}, v{R4}")
            A(f"v_lshl_add_u32 v{VV+dt}, v1, 6, v{T1}")
    else:
        A(f"""
        v_lshl_add_u32 v{T0}, v{G2}, 1, v{HI}         ; cm(g)
        v_xor_b32 v{T0}, v{T0}, v{L16}
        v_lshlrev_b32 v{T0}, 4, v{T0}
        v_lshl_add_u32 v{VK}, v{L16}, 8, v{T0}
        """)
        for t in range(1, 4):
            A(f"v_xor_b32 v{VK+t}, {t << 6}, v{VK}")
        A(f"""
        v_and_b32 v{T0}, 1, v{R4}
        v_lshrrev_b32 v{T1}, 1, v{R4}
        v_lshl_add_u32 v{T0}, v{T1}, 2, v{T0}
        v_lshl_add_u32 v{T0}, v{G2}, 3, v{T0}         ; f
        v_and_b32 v{T1}, 2, v{C}
        v_xor_b32 v{T0}, v{T0}, v{T1}                 ; f ^ 2(c/2)
        v_lshlrev_b32 v{T0}, 4, v{T0}
        v_and_b32 v{T1}, 1, v{C}
        v_lshl_add_u32 v{T0}, v{T1}, 3, v{T0}
        v_lshl_add_u32 v{T1}, v{G}, 2, v{R4}          ; 4g + r4
        v_lshl_add_u32 v{T0}, v{T1}, 8, v{T0}
        v_add_u32 v{VV}, {LDS_V}, v{T0}
        """)
        for dt in range(1, 8):
            A(f"v_xor_b32 v{VV+dt}, {(4*(dt//2) + dt%2) << 4}, v{VV}")
        A(f"v_lshl_add_u32 v{T0}, v{HI}, 2, v{R4}")
    A(f"""
    v_lshlrev_b32 v{T1}, 8, v{G}
    v_add_u32 v{T1}, s{S_W4K}, v{T1}
    """)
    for i in range(4):
        A(f"v_add_u32 v1, {4*i}, v{G}")
        A(f"v_xor_b32 v1, v1, v{L16}")
        A(f"v_lshl_add_u32 v{VKD+i}, v1, 4, v{T1}")
    if not M16:
        A(f"""
        v_lshlrev_b32 v1, 2, v{G}
        v_xor_b32 v1, v1, v{L16}
        v_lshl_add_u32 v{VVD}, v1, 4, v{T1}
        """)
    else:
        A(f"""
        v_lshl_add_u32 v1, v{HI}, 2, v{G2}
        v_xor_b32 v1, v1, v{L16}
        v_lshl_add_u32 v{VVD}, v1, 4, v{T1}
        """)
    A(f"""
    v_lshlrev_b32 v{T1}, 7, v{T0}
    v_lshl_add_u32 v{T1}, v{G2}, 5, v{T1}
    v_lshrrev_b32 v1, 1, v{R4}              ; r4>>1
    v_lshl_add_u32 v41, v1, 6, v{T1}        ; ct=0
    v_xor_b32 v1, 1, v1
    v_lshl_add_u32 v42, v1, 6, v{T1}        ; ct=1
    v_lshlrev_b32 v43, 3, v{C}              ; c*8
    v_add_u32 v43, {LDS_V}, v43
    v_add_u32 v{WR1}, v41, v43
    v_add_u32 v{WR1+1}, v42, v43
    v_and_b32 v1, 1, v{C}
    v_lshlrev_b32 v1, 1, v1
    v_lshrrev_b32 v43, 1, v{C}
    v_or_b32 v1, v1, v43                    ; sigma(c)
    v_lshlrev_b32 v43, 3, v1
    v_add_u32 v{WRL}, v41, v43
    v_add_u32 v{WRL+1}, v42, v43
    v_add_u32 v{WRH}, 98304, v{WRL}
    v_add_u32 v{WRH+1}, 98304, v{WRL+1}
    """)
    if M16: A(f"v_xor_b32 v{VVD1}, 128, v{VVD}")
    for _ in range(36): emit_vm(q1.pop(0))

    def wfrag(n, f):
        return WF + (n % 2) * 16 + f * 4 if n < 32 else WF + (n % 4) * 8 + f * 4
    def w_reads(n):
        ks = n % 32; st, kk = divmod(ks, 4)
        out = []
        for f in range(4 if n < 32 else 2):
            if n < 32 and f < 2: reg = WR1 + f; imm = (unit("w1", st) - 8) * 8192
            elif n < 32: reg = WRL + f - 2; imm = unit("ql", st) * 8192
            else: reg = WRH + f; imm = (unit("qh", st) - 12) * 8192
            for e2 in range(2):
                out.append((f"ds_read_b64_tr_b16 {v(wfrag(n, f) + 2*e2, 2)}, v{reg} offset:{imm + (16*kk + 8*e2) * 128}", ("w", n, f)))
        return out
    ACC = [32, 96, 160]
    def acc(p, ct, qt): return ACC[p] + (ct * 2 + qt) * 16
    fill = []
    def add_silu():
        for ct in range(2):
            for qt in range(2):
                for tp in range(2):
                    base = acc(0, ct, qt) + 8 * tp
                    for j in range(4):
                        x0, x1 = base + 2*j, base + 2*j + 1
                        ta, tb = (20, 21) if j % 2 == 0 else (22, 23)
                        fill.extend([
                            (f"v_mul_f32 v{ta}, s{S_NLOG2E}, v{x0}", 4),
                            (f"v_mul_f32 v{tb}, s{S_NLOG2E}, v{x1}", 4),
                            (f"v_exp_f32 v{ta}, v{ta}", 8),
                            (f"v_exp_f32 v{tb}, v{tb}", 8),
                            (f"v_add_f32 v{ta}, 1.0, v{ta}", 4),
                            (f"v_add_f32 v{tb}, 1.0, v{tb}", 4),
                            (f"v_rcp_f32 v{ta}, v{ta}", 8),
                            (f"v_rcp_f32 v{tb}, v{tb}", 8),
                            (f"v_mul_f32 v{x0}, v{x0}, v{ta}", 4),
                            (f"v_mul_f32 v{x1}, v{x1}, v{tb}", 4),
                            (f"v_cvt_pk_bf16_f32 v{base + j}, v{x0}, v{x1}", 4),
                        ])
                    fill.append(("HSTORE", base, ct, qt, tp))
    def add_qepi(p):
        half = p - 1
        for ct in range(2):
            for qt in range(2):
                for tp in range(2):
                    base = acc(p, ct, qt) + 8 * tp
                    t = half * 4 + ct * 2 + tp
                    for j in range(4):
                        x0, x1 = base + 2*j, base + 2*j + 1
                        fill.extend([
                            (f"v_mul_f32 v{x0}, s{S_SCALE}, v{x0}", 4),
                            (f"v_mul_f32 v{x1}, s{S_SCALE}, v{x1}", 4),
                            (f"v_cvt_pk_bf16_f32 v{QF + qt*32 + t*4 + j}, v{x0}, v{x1}", 4),
                        ])
                    if M16 and tp == 1:
                        for j in range(4):
                            fill.append((f"v_permlane16_swap_b32 v{QF + qt*32 + (t-1)*4 + j}, v{QF + qt*32 + t*4 + j}", 4))
    def pop_fill(budget):
        while fill and budget > 0:
            f = fill[0]
            if f[0] == "HSTORE":
                fill.pop(0)
                _, base, ct, qt, tp = f
                A(f"s_mov_b32 s{S_T1}, {qt * 114688}")
                vm.issue(f"buffer_store_dwordx4 {v(base, 4)}, v{VL16}, s[{SH}:{SH+3}], s{S_T1} offen offset:{(2*ct + tp) * 1024}{SC1}", ("h", 0))
                budget -= 12
                continue
            if f[1] > budget + 2: break
            fill.pop(0)
            A(f[0]); budget -= f[1]

    syncs = {}
    for st in range(1, 8): syncs[4*st - 1] = [("w1", st), ("ql", st), ("xn", st)]
    syncs[30] = [("qh", j) for j in range(4)]
    syncs[32] = []
    syncs[46] = [("qh", j) for j in range(4, 8)]
    vq = q1
    vm.wait([("w1", 0), ("ql", 0), ("xn", 0)])
    A("s_barrier")
    stamp()
    for (t, tag) in w_reads(0): ds.issue(t, tag)
    late_k = False
    for n in range(64):
        phA = n < 32
        ks = n % 32
        if n == 32: stamp()
        if n in syncs:
            assert not any(g[2] in syncs[n] for g in vq), (n, syncs[n])
            if syncs[n]: vm.wait(syncs[n])
            A("s_barrier")
        if n == 19:
            for st in range(4, 8): vq += w_dma("qh", st)
        if n == 32:
            assert not vq, vq
            vq += kv_dma("v", 0) + kv_dma("v", 1) + kv_dma("k", 0)
        if n == 33:
            add_silu(); add_qepi(1)
        if n > 33 and not late_k and not any(f[0] == "HSTORE" for f in fill):
            late_k = True
            vq += kv_dma("k", 1) + kv_dma("k", 2)
        if n < 31: rd = w_reads(n + 1)
        elif n == 31: rd = w_reads(32) + w_reads(33)
        elif n + 2 < 64: rd = w_reads(n + 2)
        else: rd = []
        i = 0
        for f in range(4 if phA else 2):
            w = ds.wait(("w", n, f))
            if w: A(w)
            p, ct = (divmod(f, 2) if phA else (2, f))
            for qt in range(2):
                d = v(acc(p, ct, qt), 16)
                A(mfma(d, v(wfrag(n, f), 4), a(qt*128 + ks*4, 4), "0" if ks == 0 else d))
                if rd:
                    t, tag = rd.pop(0); ds.issue(t, tag)
                budget = opt.get("fbud", 20)
                if vq and vm.outstanding() < 62 and i % 2 == 0:
                    emit_vm(vq.pop(0)); budget -= 10
                pop_fill(budget)
                i += 1
        assert not rd
    assert late_k
    while vq: emit_vm(vq.pop(0))
    while fill: pop_fill(1000)
    A.nop(12)
    add_qepi(2)
    while fill: pop_fill(1000)

    tail_setup = []
    def ts(txt):
        tail_setup.append([l.strip() for l in txt.strip().split("\n") if l.strip()])
    ts(f"""
    s_mul_i32 s{S_RING}, s{S_W}, {RINGB}
    s_lshl_b32 s{S_T0}, s{S_NB}, 7
    s_mul_i32 s3, s{S_W}, {NF * 16384}
    s_add_u32 s3, s3, s{S_T0}
    s_add_u32 s{SW2}, s{S_PW2}, s3
    s_addc_u32 s{SW2+1}, s{S_PW2+1}, 0
    s_sub_u32 s{SW2+2}, {1792 * 1024}, s3
    s_mov_b32 s{SW2+3}, 0x20000
    s_mul_i32 s3, s{S_W}, {NS * 16384}
    s_add_u32 s3, s3, s{S_T0}
    s_add_u32 s{SWO}, s{S_PWO}, s3
    s_addc_u32 s{SWO+1}, s{S_PWO+1}, 0
    s_sub_u32 s{SWO+2}, {4096 * 1024}, s3
    s_mov_b32 s{SWO+3}, 0x20000
    """)
    ts(f"""
    s_mul_i32 s3, s{S_QT}, {2 * 114688}
    s_mul_i32 s{S_T1}, s{S_W}, {NF * 1024}
    s_add_u32 s3, s3, s{S_T1}
    s_add_u32 s3, s3, {H_OFF}
    s_add_u32 s{SHB}, s56, s3
    s_addc_u32 s{SHB+1}, s57, 0
    s_sub_u32 s{SHB+2}, {2 * 114688}, s{S_T1}
    s_mov_b32 s{SHB+3}, 0x20000
    s_lshl_b32 s3, s{S_QT}, 19
    s_lshl_b32 s{S_T1}, s{S_W}, 16
    s_add_u32 s3, s3, s{S_T1}
    s_add_u32 s3, s3, {O_OFF}
    s_add_u32 s{SOB}, s56, s3
    s_addc_u32 s{SOB+1}, s57, 0
    s_sub_u32 s{SOB+2}, {2 * 262144}, s{S_T1}
    s_mov_b32 s{SOB+3}, 0x20000
    """)
    ts(f"""
    s_lshl_b32 s3, s{S_QT}, 16
    s_add_u32 s3, s3, s{S_T0}
    s_add_u32 s{SX}, s{S_PX}, s3
    s_addc_u32 s{SX+1}, s{S_PX+1}, 0
    s_sub_u32 s{SX+2}, {2048 * 1024}, s3
    s_mov_b32 s{SX+3}, 0x20000
    s_add_u32 s{SOUT}, s{S_POUT}, s3
    s_addc_u32 s{SOUT+1}, s{S_POUT+1}, 0
    s_sub_u32 s{SOUT+2}, {2048 * 1024}, s3
    s_mov_b32 s{SOUT+3}, 0x20000
    s_and_b32 s3, s{S_W}, 1
    s_mul_i32 s{S_HQ}, s3, 114688
    s_sub_u32 s{S_HQ+1}, 114688, s{S_HQ}
    s_lshl_b32 s{S_OQ}, s3, 18
    s_sub_u32 s{S_OQ+1}, 262144, s{S_OQ}
    """)
    ts(f"""
    v_lshrrev_b32 v24, 4, v{VL16}
    v_lshrrev_b32 v25, 5, v24
    v_bfe_u32 v26, v24, 4, 1
    v_bfe_u32 v27, v24, 2, 2
    v_and_b32 v28, 3, v24
    v_lshrrev_b32 v29, 3, v24
    v_and_b32 v30, 7, v24
    v_lshlrev_b32 v31, 2, v26
    v_xor_b32 v30, v30, v31
    v_lshlrev_b32 v30, 4, v30
    v_lshl_add_u32 v{TWD0}, v29, 10, v30
    v_add_u32 v{TWD1}, {8192 - 1024}, v{TWD0}
    """)
    ts(f"""
    v_lshl_add_u32 v29, v25, 2, v27
    v_lshlrev_b32 v29, 7, v29
    v_lshl_add_u32 v29, v26, 5, v29
    v_add_u32 v29, s{S_RING}, v29
    v_and_b32 v30, 1, v28
    v_lshlrev_b32 v30, 1, v30
    v_lshrrev_b32 v31, 1, v28
    v_or_b32 v30, v30, v31
    v_lshl_add_u32 v29, v30, 3, v29
    v_lshrrev_b32 v30, 1, v27
    s_lshr_b32 s3, s{S_W}, 1
    v_xor_b32 v30, s3, v30
    v_lshl_add_u32 v{TWR0}, v30, 6, v29
    v_xor_b32 v30, 1, v30
    v_lshl_add_u32 v{TWR1}, v30, 6, v29
    """)
    ts(f"""
    v_and_b32 v29, 31, v24
    s_and_b32 s3, s{S_W}, 1
    s_lshl_b32 s3, s3, 5
    v_add_u32 v29, s3, v29
    v_lshlrev_b32 v29, 10, v29
    v_lshl_add_u32 v29, v25, 4, v29
    s_lshr_b32 s3, s{S_W}, 1
    s_lshl_b32 s3, s3, 6
    v_add_u32 v{TXA}, s3, v29
    s_mul_i32 s3, s{S_W}, {3 * 4096}
    s_add_u32 s3, s3, {LDS_EX}
    v_add_u32 v{TFR}, s3, v{VL16}
    v_add_u32 v{TSW}, s{S_RING}, v{VL16}
    """)
    x = ""
    for j in (1, 2, 3):
        x += f"""
        s_xor_b32 s3, s{S_W}, {j}
        s_mul_i32 s{S_T1}, s3, {3 * 4096}
        s_add_u32 s{S_T1}, s{S_T1}, {LDS_EX + (j - 1) * 4096}
        v_add_u32 v{TFW + j - 1}, s{S_T1}, v{VL16}
        s_mul_i32 s{S_T1}, s3, {RINGB}
        s_add_u32 s{S_T1}, s{S_T1}, {(j - 1) * 4096}
        v_add_u32 v{TSR + j - 1}, s{S_T1}, v{VL16}
        """
    ts(x)
    ts(f"""
    s_lshr_b32 s3, s{S_QT}, 2
    s_lshl_b32 s{S_T1}, s3, 2
    s_add_u32 s{S_T1}, s{S_T1}, {HOFF}
    v_mov_b32 v{THP}, s{S_T1}
    s_lshl_b32 s{S_T1}, s3, 4
    s_add_u32 s{S_T1}, s{S_T1}, 128
    v_mov_b32 v{TOP}, s{S_T1}
    s_lshl_b32 s{S_T1}, s{S_QB}, 4
    s_add_u32 s{S_T1}, s{S_T1}, 128
    v_mov_b32 v{TOWN}, s{S_T1}
    """)
    assert len(tail_setup) == 8

    def kread(slot, sub, t, ring):
        if M16:
            kt, T = divmod(t, 4)
            return (f"ds_read_b128 {a(AK + 4*ring, 4)}, v{VK+T} offset:{slot*16384 + sub*8192 + kt*4096}")
        return (f"ds_read_b128 {a(AK + 4*ring, 4)}, v{VK+t} offset:{slot*16384 + sub*8192}")
    def vread(slot, sub, g, ring):
        if M16:
            o = slot*16384 + sub*8192
            return [f"ds_read_b64_tr_b16 {a(AV + 4*ring, 2)}, v{VV+g} offset:{o}",
                    f"ds_read_b64_tr_b16 {a(AV + 4*ring + 2, 2)}, v{VV+g} offset:{o + 4096}"]
        u, dt = divmod(g, 4)
        o = slot*16384 + sub*8192 + u*4096
        return [f"ds_read_b64_tr_b16 {a(AV + 4*ring, 2)}, v{VV+dt} offset:{o}",
                f"ds_read_b64_tr_b16 {a(AV + 4*ring + 2, 2)}, v{VV+dt} offset:{o + 2048}"]
    state = {"pend": [], "dma": [], "uid": 0, "track": False}
    def reads_for(desc, g):
        uid, qk, pv = desc
        out = []
        if qk: out.append((kread(qk[0], qk[1], g, g % 4), ("k", uid, g)))
        if pv:
            r = vread(pv[0], pv[1], g, g % 4)
            out += [(r[0], ("v", uid, g)), (r[1], ("v", uid, g))]
        return out
    def mkdesc(qk, pv):
        state["uid"] += 1
        return (state["uid"], qk, pv)

    def mfma16(d, a_, b_, c_):
        return f"v_mfma_f32_16x16x32_bf16 {d}, {a_}, {b_}, {c_}"
    def q16(q4, T): return QF + (q4 // 2) * 32 + (2 * T + q4 % 2) * 4
    def emit_dma_item(grp):
        if state["track"]: emit_vm(grp)
        else:
            pre, ins, tag = grp
            for pp in pre: A(pp)
            if pre and "m0" in pre[-1]: A.nop(1)
            A(ins)
    def step16(desc, nxt, par, sm, cneg, first_pv, sync, extra, dma_every):
        uid, qk, pv = desc
        Sq = S0 + (1 - par) * 32
        Ss = S0 + par * 32
        Pw = P0 + par * 16
        Pr = P0 + (1 - par) * 16
        for g in range(8):
            mf = []
            if qk:
                kt, T = divmod(g, 4)
                for q4 in range(4):
                    d = v(Sq + (kt*4 + q4)*4, 4)
                    c = d if T > 0 else (v(NEGM + q4*4, 4) if cneg else "0")
                    mf.append(mfma16(d, a(AK + 4*(g % 4), 4), v(q16(q4, T), 4), c))
            if pv:
                for q4 in range(4):
                    d = a(AO + (g*4 + q4)*4, 4)
                    mf.append(mfma16(d, a(AV + 4*(g % 4), 4), v(Pr + q4*4, 4), "0" if first_pv else d))
                if g % 2 == 1:
                    q4 = g // 2
                    d = v(LACC + q4*4, 4)
                    mf.append(mfma16(d, v(ONES, 4), v(Pr + q4*4, 4), "0" if first_pv else d))
            ng = len(mf)
            rd = reads_for(desc, g + 2) if g < 6 else (reads_for(nxt, g - 6) if nxt else [])
            dsr = [("ds", t, tag) for (t, tag) in rd]
            pend = state["pend"]
            newpend = []
            if sm:
                kt, q4 = divmod(g, 4)
                r = [Ss + (kt*4 + q4)*4 + i for i in range(4)]
                pw = Pw + q4*4 + kt*2
                ex = [f"v_exp_f32 v{x}, v{x}" for x in r]
                cv = [f"v_cvt_pk_bf16_f32 v{pw}, v{r[0]}, v{r[1]}", f"v_cvt_pk_bf16_f32 v{pw+1}, v{r[2]}, v{r[3]}"]
                newpend = [cv[1]]
            G = [[] for _ in range(ng)]
            free = []
            if ng >= 8 and sm:
                d_ = dsr + [None] * (3 - len(dsr)); p_ = pend[0] if pend else None
                G[0] = [ex[0]]; G[1] = [d_[0], d_[1]]; G[2] = [ex[1]]; G[3] = [d_[2], p_]
                G[4] = [ex[2]]; G[5] = [cv[0]]; G[6] = [ex[3]]
                G = [[x for x in l if x] for l in G]
                free = [5, 7] + ([8] if ng == 9 else [])
                dpos = opt.get("dp16", 0)
                if dpos == 0: slots = [7] if ng == 8 else [7, 8]
                elif dpos == 1: slots = [5, 7] if ng == 8 else [7, 8]
                elif dpos == 2: slots = [] if ng == 8 else [7, 8]
                else: slots = [7]
            else:
                d_ = dsr + [None] * (3 - len(dsr)); p_ = pend[0] if pend else None
                if sm: seq = [ex[0], d_[0], ex[1], p_, d_[1], ex[2], d_[2], cv[0], ex[3]]
                else: seq = [d_[0], p_, d_[1], d_[2]]
                seq = [x for x in seq if x]
                per = -(-len(seq) // ng) if seq else 1
                for k, x in enumerate(seq): G[min(k // per, ng - 1)].append(x)
                slots = list(range(ng))
            state["pend"] = newpend
            w = None
            tags = ([("k", uid, g)] if qk else []) + ([("v", uid, g)] if pv else [])
            for t in tags:
                x = ds.wait(t)
                if x: w = x
            if w: A(w)
            pre_sync = (g == 6 and sync is not None)
            for i, m in enumerate(mf):
                A(m)
                if i == 0 and pre_sync:
                    sync()
                for x in G[i]:
                    if isinstance(x, tuple): ds.issue(x[1], x[2])
                    else: A(x)
                if state["dma"] and (i in slots or dma_every):
                    emit_dma_item(state["dma"].pop(0))
                if extra and i == ng - 1:
                    for x in extra.pop(0): A(x)

    def step(desc, nxt, par, sm, cneg=True, first_pv=False, sync=None, extra=None, dma_every=False, gbase=None):
        uid, qk, pv = desc
        Sq = S0 + (1 - par) * 32
        Ss = S0 + par * 32
        Pw = P0 + par * 16
        Pr = P0 + (1 - par) * 16
        extra = list(extra or [])
        if M16:
            step16(desc, nxt, par, sm, cneg, first_pv, sync, extra, dma_every)
            assert not extra
            return
        for g in range(8):
            tags = []
            if qk: tags.append(("k", uid, g))
            if pv: tags.append(("v", uid, g))
            w = None
            for t in tags:
                x = ds.wait(t)
                if x: w = x
            if w: A(w)
            mf = []
            if qk:
                for qt in range(2):
                    d = v(Sq + qt*16, 16)
                    c = d if g > 0 else (v(NEGM + qt*16, 16) if cneg else "0")
                    mf.append(mfma(d, a(AK + 4*(g % 4), 4), v(QF + qt*32 + g*4, 4), c))
            if pv:
                u, dt = divmod(g, 4)
                for qt in range(2):
                    d = a(AO + qt*64 + dt*16, 16)
                    c = "0" if (first_pv and u == 0) else d
                    mf.append(mfma(d, a(AV + 4*(g % 4), 4), v(Pr + qt*8 + u*4, 4), c))
            rd = reads_for(desc, g + 2) if g < 6 else (reads_for(nxt, g - 6) if nxt else [])
            ng = len(mf)
            pre_sync = (g == 6 and sync is not None)
            if sm:
                qt, k4 = divmod(g, 4)
                r = [Ss + qt*16 + 4*k4 + i for i in range(4)]
                l = LA if qt == 0 else LB
                pw = Pw + qt*8 + 2*k4
                ex = [f"v_exp_f32 v{x}, v{x}" for x in r]
                newpend = [f"v_add_f32 v{l}, v{l}, v{r[3]}", f"v_cvt_pk_bf16_f32 v{pw+1}, v{r[2]}, v{r[3]}"]
            else:
                ex = []; newpend = []
            pend = state["pend"]
            if ng == 4:
                G = [[], [], [], []]
                if sm:
                    G[0] = [ex[0]]; G[1] = [ex[1]]; G[2] = [ex[2]]; G[3] = [ex[3]]
                for i, (t, tag) in enumerate(rd): G[min(i, 2)].append(("ds", t, tag))
                G[0] += pend
                if sm:
                    G[1].append(f"v_add_f32 v{l}, v{l}, v{r[0]}")
                    G[2].append(f"v_add_f32 v{l}, v{l}, v{r[1]}")
                    G[2].append(f"v_cvt_pk_bf16_f32 v{pw}, v{r[0]}, v{r[1]}")
                    G[3].append(f"v_add_f32 v{l}, v{l}, v{r[2]}")
            else:
                G = [[], []]
                if sm:
                    G[0] = [ex[0], ex[1]]; G[1] = [ex[2], ex[3]]
                for i, (t, tag) in enumerate(rd): G[min(i, 1)].append(("ds", t, tag))
                G[0] += pend
                if sm:
                    G[0].append(f"v_add_f32 v{l}, v{l}, v{r[0]}")
                    G[1].append(f"v_add_f32 v{l}, v{l}, v{r[1]}")
                    G[1].append(f"v_cvt_pk_bf16_f32 v{pw}, v{r[0]}, v{r[1]}")
                    G[1].append(f"v_add_f32 v{l}, v{l}, v{r[2]}")
            state["pend"] = newpend
            for i, m in enumerate(mf):
                A(m)
                if i == 0 and pre_sync:
                    sync()
                for x in G[i]:
                    if isinstance(x, tuple): ds.issue(x[1], x[2])
                    else: A(x)
                if gbase is not None and state.get("dpos") is not None:
                    go = ((gbase + 4 * g + i - 56) % 64) in state["dpos"]
                else:
                    go = (i % 2 == 1 or ng == 2 or dma_every)
                if state["dma"] and go:
                    grp = state["dma"].pop(0)
                    if state["track"]: emit_vm(grp)
                    else:
                        pre, ins, tag = grp
                        for pp in pre: A(pp)
                        if pre and "m0" in pre[-1]: A.nop(1)
                        A(ins)
                if extra and i == ng - 1:
                    for x in extra.pop(0): A(x)
        assert not extra

    def issue_next(s):
        assert not state["dma"]
        k = kv_dma("k", s + 3, S_KOFF)
        x = kv_dma("v", s + 2, S_VOFF)
        k[0] = ([f"s_add_u32 s{S_KOFF}, s{S_KOFF}, 16384", f"s_add_u32 s{S_VOFF}, s{S_VOFF}, 16384"] + k[0][0], k[0][1], k[0][2])
        state["dma"] = k + x
    def sync_fn(cnt, s, issue=True, post=None):
        def f():
            if callable(cnt): cnt()
            else: A(f"s_waitcnt vmcnt({cnt})")
            A("s_barrier")
            if post: post()
            if issue: issue_next(s)
        return f
    uniq = [0]
    def one_lane_atomic(voff, guard_mode):
        uniq[0] += 1
        lab = f"atom_skip{uniq[0]}"
        A(f"s_cmp_lg_u32 s{S_W}, 0")
        A(f"s_cbranch_scc1 {lab}")
        if guard_mode:
            A(f"s_cmp_lg_u32 s{S_MODE}, 0")
            A(f"s_cbranch_scc1 {lab}")
        A("v_mov_b32 v25, 1")
        A("s_mov_b64 exec, 1")
        A(f"global_atomic_add v{voff}, v25, s[{S_DBG}:{S_DBG+1}]")
        A("s_mov_b64 exec, -1")
        A.label(lab)
    def spin(voff, name, have_first):
        A(f"s_mov_b32 s{S_SPIN}, 0x10000")
        if have_first:
            A("v_readfirstlane_b32 s3, v24")
            A("s_nop 3")
            A("s_cmp_ge_u32 s3, 32")
            A(f"s_cbranch_scc1 {name}_ok")
        A.label(f"{name}_loop")
        A(f"global_load_dword v24, v{voff}, s[{S_DBG}:{S_DBG+1}] sc1")
        A("s_waitcnt vmcnt(0)")
        A("v_readfirstlane_b32 s3, v24")
        A("s_nop 3")
        A("s_cmp_ge_u32 s3, 32")
        A(f"s_cbranch_scc1 {name}_ok")
        A(f"s_sub_u32 s{S_SPIN}, s{S_SPIN}, 1")
        A(f"s_cbranch_scc1 {name}_ok")
        A("s_sleep 2")
        A(f"s_branch {name}_loop")
        A.label(f"{name}_ok")

    stamp()
    A.label("attn_go")
    vm.wait([("k", 0)])
    A(f"""
    s_barrier
    s_mov_b32 s{S_KOFF}, {2*16384}
    s_mov_b32 s{S_VOFF}, {1*16384}
    """)
    if M16:
        for i in range(4): A(f"v_mov_b32 v{ONES+i}, 0x3f803f80")
    else:
        A(f"v_mov_b32 v{LA}, 0")
        A(f"v_mov_b32 v{LB}, 0")
    d_m1 = mkdesc((0, 0), None)
    d_0 = mkdesc((0, 1), None)
    for g in (0, 1):
        for (t, tag) in reads_for(d_m1, g): ds.issue(t, tag)
    step(d_m1, d_0, par=1, sm=False, cneg=False, extra=tail_setup)
    A.nop(12)
    A(f"s_cmp_lg_u32 s{S_MODE}, 0")
    A("s_cbranch_scc1 attn_have_max")
    def xlane_max16():
        for swp in ("v_permlane16_swap_b32", "v_permlane32_swap_b32"):
            for q4 in range(4): A(f"v_mov_b32 v{28+q4}, v{24+q4}")
            A.nop(1)
            for q4 in range(4): A(f"{swp} v{24+q4}, v{28+q4}")
            A.nop(1)
            for q4 in range(4): A(f"v_max_f32 v{24+q4}, v{24+q4}, v{28+q4}")
    if M16:
        for q4 in range(4):
            r = [S0 + (kt*4 + q4)*4 + i for kt in range(2) for i in range(4)]
            m = 24 + q4
            A(f"v_max3_f32 v{m}, v{r[0]}, v{r[1]}, v{r[2]}")
            A(f"v_max3_f32 v{m}, v{m}, v{r[3]}, v{r[4]}")
            A(f"v_max3_f32 v{m}, v{m}, v{r[5]}, v{r[6]}")
            A(f"v_max_f32 v{m}, v{m}, v{r[7]}")
        xlane_max16()
        for q4 in range(4):
            A(f"v_add_f32 v{24+q4}, {fhex(float(opt.get('off', 96)))}, v{24+q4}")
        for q4 in range(4):
            for i in range(4):
                A(f"v_sub_f32 v{NEGM + q4*4 + i}, 0, v{24+q4}")
        A.label("attn_have_max")
        for kt in range(2):
            for q4 in range(4):
                for i in range(4):
                    x = S0 + (kt*4 + q4)*4 + i
                    A(f"v_add_f32 v{x}, v{x}, v{NEGM + q4*4 + i}")
        A.nop(2)
    else:
        for qt in range(2):
            b = S0 + qt*16; m = 24 + qt
            A(f"v_max3_f32 v{m}, v{b}, v{b+1}, v{b+2}")
            for i in range(3, 15, 2):
                A(f"v_max3_f32 v{m}, v{m}, v{b+i}, v{b+i+1}")
            A(f"v_max_f32 v{m}, v{m}, v{b+15}")
        for qt in range(2):
            A(f"v_mov_b32 v{26+qt}, v{24+qt}")
        A.nop(2)
        for qt in range(2):
            A(f"v_permlane32_swap_b32 v{24+qt}, v{26+qt}")
        A.nop(1)
        for qt in range(2):
            A(f"v_max_f32 v{24+qt}, v{24+qt}, v{26+qt}")
            A(f"v_add_f32 v{24+qt}, {fhex(float(opt.get('off', 96)))}, v{24+qt}")
        for qt in range(2):
            for i in range(16):
                A(f"v_sub_f32 v{NEGM + qt*16 + i}, 0, v{24+qt}")
        A.label("attn_have_max")
        for qt in range(2):
            for i in range(16):
                A(f"v_add_f32 v{S0 + qt*16 + i}, v{S0 + qt*16 + i}, v{NEGM + qt*16 + i}")
        A.nop(2)
    def mac(s):
        ks, vs = (s + 1) % 4, s % 4
        last = (s == 31)
        return (mkdesc(None if last else (ks, 0), (vs, 0)), mkdesc(None if last else (ks, 1), (vs, 1)))
    m0 = mac(0)
    def post0():
        A(f"s_lshl_b32 s3, s{S_QB}, 2")
        if HOFF: A(f"s_add_u32 s3, s3, {HOFF}")
        A("v_mov_b32 v24, s3")
        one_lane_atomic(24, guard_mode=True)
    assert vm.count_after([("h", 0)]) >= vm.count_after([("k", 1)])
    step(d_0, m0[0], par=0, sm=True, sync=sync_fn(lambda: vm.wait([("k", 1), ("v", 0)]), 0, post=post0))
    def macro(m, mnext, s, first=False, sync=None, dma_every=False):
        step(m[0], m[1], par=1, sm=True, first_pv=first, dma_every=dma_every, gbase=0)
        step(m[1], mnext[0], par=0, sm=True, sync=sync, dma_every=dma_every, gbase=32)
    m1 = mac(1)
    dmode = opt.get("dmode", 0)
    def dpos_for(w):
        if dmode == 0: return None
        d0, dstep, dw = opt.get("d0", 1), opt.get("dstep", 8), opt.get("dw", 2)
        return {d0 + dw * w + dstep * j for j in range(8)}
    state["dpos"] = dpos_for(0)
    macro(m0, m1, 0, first=True, sync=sync_fn(8, 1))
    stamp()
    A(f"s_mov_b32 s{S_CNT}, 7")
    entry_pend = [t[0] for t in ds.pending()]
    entry_state = (list(state["pend"]), [x[1] for x in state["dma"]])
    nvar = 4 if dmode == 2 else 1
    ms = [m1] + [mac(s) for s in (2, 3, 4, 5)]
    if nvar > 1:
        for w in range(1, nvar):
            A(f"s_cmp_eq_u32 s{S_W}, {w}")
            A(f"s_cbranch_scc1 attn_loop{w}")
    saved = (list(ds.ops), ds.retired, list(state["pend"]), list(state["dma"]))
    loops = []
    for w in range(nvar):
        ds.ops, ds.retired = list(saved[0]), saved[1]
        state["pend"], state["dma"] = list(saved[2]), list(saved[3])
        state["dpos"] = dpos_for(w)
        A.label(f"attn_loop{w}" if w else "attn_loop")
        loop_start = len(A.L)
        for i in range(4):
            macro(ms[i], ms[i+1], 1 + i, sync=sync_fn(8, 2 + i))
        assert [t[0] for t in ds.pending()] == entry_pend
        assert entry_state == (list(state["pend"]), [x[1] for x in state["dma"]]), (entry_state, state)
        A(f"s_sub_u32 s{S_CNT}, s{S_CNT}, 1")
        A(f"s_cmp_lg_u32 s{S_CNT}, 0")
        A(f"s_cbranch_scc1 attn_loop{w if w else ''}")
        loops.append((loop_start, len(A.L)))
        if w != nvar - 1: A("s_branch attn_loop_done")
    A.label("attn_loop_done")
    state["dpos"] = dpos_for(0)
    stamp()

    def t_loads(n, want="wb"):
        f = n < NF
        ks = n if f else n - NF
        sw = SW2 if f else SWO
        sb = SHB if f else SOB
        sq = S_HQ if f else S_OQ
        slot = n % RING
        g = []
        if "w" in want and opt.get("abl_w", 0) and not f:
            pass
        elif "w" in want:
            g.append(([f"s_add_u32 m0, s{S_RING}, {slot * 2048}", f"s_mov_b32 s{S_T0}, {ks * 16384}"],
                      f"buffer_load_dwordx4 v{TWD0}, s[{sw}:{sw+3}], s{S_T0} offen lds", ("w", n)))
            g.append(([], f"buffer_load_dwordx4 v{TWD1}, s[{sw}:{sw+3}], s{S_T0} offen offset:1024 lds", ("w", n)))
        if "b" in want:
            for qs in range(2):
                g.append(([f"s_add_u32 s{S_T1}, s{sq + qs}, {ks * 1024}"],
                          f"buffer_load_dwordx4 {a(AB + slot * 8 + qs * 4, 4)}, v{VL16}, s[{sb}:{sb+3}], s{S_T1} offen{SC1}", ("b", n)))
        return g
    def pf_wo():
        A(f"s_and_b32 s3, s{S_QT}, 3")
        A(f"s_lshl_b32 s3, s3, 18")
        A(f"v_lshlrev_b32 v26, 6, v{VL16}")
        for i in range(4):
            A(f"s_add_u32 s{S_T0}, s3, {i * 65536}")
            vm.issue(f"buffer_load_dword v27, v26, s[{SWO}:{SWO+3}], s{S_T0} offen", ("pf", 0))
    def pf_o():
        A(f"v_lshlrev_b32 v26, 3, v{VL16}")
        A(f"s_lshl_b32 s3, s{S_NB}, 13")
        for qs in range(2):
            A(f"s_add_u32 s{S_T0}, s3, {qs * 262144}")
            vm.issue(f"buffer_load_dword v27, v26, s[{SOB}:{SOB+3}], s{S_T0} offen sc1", ("pf", 0))
    def t_frag(n, cs): return TWF + (n % 3) * 8 + cs * 4
    def t_reads(n):
        slot = n % RING
        out = []
        for cs in range(2):
            for e2 in range(2):
                out.append((f"ds_read_b64_tr_b16 {v(t_frag(n, cs) + 2*e2, 2)}, v{TWR0 + cs} offset:{slot * 2048 + e2 * 1024}", ("tw", n)))
        return out

    m29 = ms[4]; m30 = mac(30); m31 = mac(31)
    def post30():
        A(f"global_load_dword v24, v{THP}, s[{S_DBG}:{S_DBG+1}] sc1")
    macro(m29, m30, 29, sync=sync_fn(8, 30, issue=False, post=post30))
    def post31():
        spin(THP, "hwait", have_first=True)
        vm.ops = []; vm.retired = 0
        state["track"] = True
        assert not state["dma"]
        state["dpos"] = None
        for n in range(DEPTH): state["dma"] += t_loads(n)
    def pre31():
        A("s_waitcnt vmcnt(0)")
        A(ds.waitall())
    macro(m30, m31, 30, sync=sync_fn(pre31, 31, issue=False, post=post31), dma_every=False)
    step(m31[0], m31[1], par=1, sm=True)
    step(m31[1], None, par=0, sm=False)
    assert not state["pend"]
    while state["dma"]: emit_vm(state["dma"].pop(0))
    state["track"] = False
    stamp()
    if M16:
        A.nop(8)
        A(f"""
        v_mov_b32 v30, 0x4e800000                 ; 2^30
        v_cmp_nlt_f32 vcc, v{LACC}, v30
        v_cmp_nlt_f32 s[44:45], v{LACC+4}, v30
        v_rcp_f32 v20, v{LACC}
        v_rcp_f32 v21, v{LACC+4}
        s_or_b64 s[44:45], vcc, s[44:45]
        v_cmp_nlt_f32 vcc, v{LACC+8}, v30
        v_rcp_f32 v22, v{LACC+8}
        v_rcp_f32 v23, v{LACC+12}
        v_mov_b32 v24, 0
        s_or_b64 s[44:45], vcc, s[44:45]
        v_cmp_nlt_f32 vcc, v{LACC+12}, v30
        v_mov_b32 v25, 0
        v_mov_b32 v26, 0
        v_mov_b32 v27, 0
        s_or_b64 s[44:45], vcc, s[44:45]
        v_and_b32 v28, 0xf0, v{VL16}
        v_and_b32 v29, 0x300, v{VL16}
        v_lshl_add_u32 v28, v29, 1, v28            ; (l%16)*16 + (g&1)*512 + (g>>1)*1024
        """)
        nst = 0
        for q4 in range(4):
            qt, sq = divmod(q4, 2)
            for u in range(4):
                src = [AO + ((2*u + h)*4 + q4)*4 + i for h in range(2) for i in range(4)]
                tmp = NEGM + (nst % 4) * 8
                pk = P0 + (nst % 4) * 4
                nst += 1
                for i in range(8): A(f"v_accvgpr_read_b32 v{tmp+i}, a{src[i]}")
                for i in range(0, 8, 2): A(f"v_max3_f32 v{24+q4}, |v{tmp+i}|, |v{tmp+i+1}|, v{24+q4}")
                for i in range(8): A(f"v_mul_f32 v{tmp+i}, v{tmp+i}, v{20+q4}")
                for j in range(4): A(f"v_cvt_pk_bf16_f32 v{pk+j}, v{tmp+2*j}, v{tmp+2*j+1}")
                A(f"s_mov_b32 s3, {qt * 262144 + (u // 2) * 4096}")
                vm.issue(f"buffer_store_dwordx4 {v(pk, 4)}, v28, s[{SO}:{SO+3}], s3 offen offset:{(u % 2) * 2048 + sq * 256}{SC1}", ("ost", 0))
        A("v_min_f32 v24, v24, v25")
        A("v_min_f32 v26, v26, v27")
        A("v_min_f32 v26, v26, v24")
    else:
        for (l, t) in ((LA, 21), (LB, 23)):
            A(f"v_mov_b32 v{t}, v{l}")
        A.nop(2)
        for (l, t) in ((LA, 21), (LB, 23)):
            A(f"v_permlane32_swap_b32 v{l}, v{t}")
        A.nop(1)
        for (l, t) in ((LA, 21), (LB, 23)):
            A(f"v_add_f32 v{l}, v{l}, v{t}")
        A(f"""
        v_mov_b32 v1, 0x4e800000                 ; 2^30
        v_cmp_nlt_f32 vcc, v{LA}, v1
        v_cmp_nlt_f32 s[44:45], v{LB}, v1
        v_rcp_f32 v{LA}, v{LA}
        v_rcp_f32 v{LB}, v{LB}
        s_or_b64 s[44:45], vcc, s[44:45]
        v_mov_b32 v26, 0
        v_mov_b32 v27, 0
        """)
        nst = 0
        for qt in range(2):
            l = LA if qt == 0 else LB
            for dt in range(4):
                for tp in range(2):
                    src = AO + qt*64 + dt*16 + tp*8
                    tmp = NEGM + (nst % 4) * 8
                    pk = P0 + (nst % 4) * 4
                    nst += 1
                    for i in range(8): A(f"v_accvgpr_read_b32 v{tmp+i}, a{src+i}")
                    for i in range(0, 8, 2): A(f"v_max3_f32 v{26+qt}, |v{tmp+i}|, |v{tmp+i+1}|, v{26+qt}")
                    for i in range(8): A(f"v_mul_f32 v{tmp+i}, v{tmp+i}, v{l}")
                    for j in range(4): A(f"v_cvt_pk_bf16_f32 v{pk+j}, v{tmp+2*j}, v{tmp+2*j+1}")
                    k = 2*dt + tp
                    so = qt * 262144 + (k // 4) * 4096
                    A(f"s_mov_b32 s3, {so}")
                    vm.issue(f"buffer_store_dwordx4 {v(pk, 4)}, v{VL16}, s[{SO}:{SO+3}], s3 offen offset:{(k % 4) * 1024}{SC1}", ("ost", 0))
        A("v_min_f32 v26, v26, v27")
    A(f"""
    v_mov_b32 v30, 0x0d800000                ; 2^-100
    v_cmp_lt_f32 vcc, v26, v30
    s_nop 1
    s_or_b64 vcc, vcc, s[44:45]
    s_cmp_lg_u64 vcc, 0
    s_cselect_b32 s3, 1, {1 if opt.get("force_fb", 0) else 0}
    s_andn2_b32 s3, s3, s{S_MODE}
    v_mov_b32 v24, s3
    v_mov_b32 v25, s{S_W}
    v_lshlrev_b32 v25, 2, v25
    v_add_u32 v25, {LDS_VOTE}, v25
    """)
    ds.issue("ds_write_b32 v25, v24", ("vote_w", 0))
    A(f"v_mov_b32 v25, {LDS_VOTE}")
    stamp()
    if opt.get("pfw", 0) == 1: pf_wo()
    vm.wait([("w", 1)])
    for n in (0, 1):
        for (t, tag) in t_reads(n): ds.issue(t, tag)
    FB = opt.get("fb", 9)
    def t_step(n):
        f = n < NF
        ks = n if f else n - NF
        accb = ACCF if f else ACCS
        tags = [("b", n)]
        if n + 2 < NK: tags.append(("w", n + 2))
        if n == FB: tags.append(("ost", 0))
        vm.wait(tags)
        if n == FB:
            x = ds.wait(("vote_w", 0))
            if x: A(x)
            A("s_barrier")
            ds.issue("ds_read_b128 v[28:31], v25", ("vote_r", 0))
        if n == FB + 1:
            x = ds.wait(("vote_r", 0))
            if x: A(x)
            A("""
            v_or3_b32 v28, v28, v29, v30
            v_or_b32 v28, v28, v31
            s_nop 0
            v_readfirstlane_b32 s3, v28
            s_nop 3
            s_cmp_lg_u32 s3, 0
            s_cbranch_scc1 attn_fallback
            """)
            one_lane_atomic(TOWN, guard_mode=False)
        w = ds.wait(("tw", n))
        if w: A(w)
        rd = t_reads(n + 2) if n + 2 < NK else []
        m = n + DEPTH
        if m >= NK: ld = []
        elif f and m >= NF: ld = t_loads(m, "w")
        else: ld = t_loads(m)
        if m == NK:
            ld = [([], f"buffer_load_dwordx4 {v(160, 4)}, v{TXA}, s[{SX}:{SX+3}], 0 offen", ("x", 0)),
                  ([], f"buffer_load_dwordx4 {v(164, 4)}, v{TXA}, s[{SX}:{SX+3}], 0 offen offset:32", ("x", 0))]
        for cs in range(2):
            for qs in range(2):
                d = v(accb + (cs * 2 + qs) * 16, 16)
                A(mfma(d, v(t_frag(n, cs), 4), a(AB + (n % RING) * 8 + qs * 4, 4), "0" if ks == 0 else d))
                if rd:
                    t, tag = rd.pop(0); ds.issue(t, tag)
                if ld: emit_vm(ld.pop(0))
        assert not ld and not rd
    for n in range(NF): t_step(n)
    stamp()
    A.nop(12)
    for j in (1, 2, 3):
        for q in range(4):
            ds.issue(f"ds_write_b128 v{TFW + j - 1}, {v(ACCF + 16*j + 4*q, 4)} offset:{q * 1024}", ("fw", 0))
    A(ds.waitall())
    A(f"s_cmp_lg_u32 s{S_W}, 0")
    A("s_cbranch_scc1 owait_ok")
    spin(TOP, "owait", have_first=False)
    A("s_barrier")
    stamp()
    if opt.get("pfo", 0) == 1: pf_o()
    for n in range(NF, NF + DEPTH):
        for g in t_loads(n, "b"): emit_vm(g)
    if opt.get("pfo", 0) == 2: pf_o()
    for j in range(3):
        for q in range(4):
            ds.issue(f"ds_read_b128 {v(160 + 16*j + 4*q, 4)}, v{TFR} offset:{j * 4096 + q * 1024}", ("fr", j))
    A(ds.wait(("fr", 0)))
    for i in range(16): A(f"v_add_f32 v{ACCF+i}, v{ACCF+i}, v{160+i}")
    A(ds.wait(("fr", 2)))
    for i in range(16): A(f"v_add_f32 v{176+i}, v{176+i}, v{192+i}")
    for i in range(16): A(f"v_add_f32 v{ACCF+i}, v{ACCF+i}, v{176+i}")
    for i in range(16): A(f"v_mul_f32 v{160+i}, s{S_NLOG2E}, v{ACCF+i}")
    for i in range(16): A(f"v_exp_f32 v{160+i}, v{160+i}")
    for i in range(16): A(f"v_add_f32 v{160+i}, 1.0, v{160+i}")
    for i in range(16): A(f"v_rcp_f32 v{160+i}, v{160+i}")
    for i in range(16): A(f"v_mul_f32 v{ACCF+i}, v{ACCF+i}, v{160+i}")
    for n in range(NF, NK): t_step(n)
    stamp()
    A.nop(12)
    for j in (1, 2, 3):
        for q in range(4):
            ds.issue(f"ds_write_b128 v{TSW}, {v(ACCS + 16*j + 4*q, 4)} offset:{(j - 1) * 4096 + q * 1024}", ("sw", 0))
    A(ds.waitall())
    A("s_barrier")
    for j in range(3):
        for q in range(4):
            ds.issue(f"ds_read_b128 {v(112 + 16*j + 4*q, 4)}, v{TSR + j} offset:{q * 1024}", ("sr", j))
    vm.wait([("x", 0)])
    for i in range(8):
        A(f"v_lshlrev_b32 v{168+2*i}, 16, v{160+i}")
        A(f"v_and_b32 v{169+2*i}, 0xffff0000, v{160+i}")
    A(ds.wait(("sr", 0)))
    for i in range(16): A(f"v_add_f32 v{ACCS+i}, v{ACCS+i}, v{112+i}")
    A(ds.wait(("sr", 2)))
    for i in range(16): A(f"v_add_f32 v{128+i}, v{128+i}, v{144+i}")
    for i in range(16): A(f"v_add_f32 v{ACCS+i}, v{ACCS+i}, v{128+i}")
    for i in range(16): A(f"v_fmac_f32 v{168+i}, v{ACCS+i}, v{ACCF+i}")
    for i in range(8): A(f"v_cvt_pk_bf16_f32 v{112+i}, v{168+2*i}, v{169+2*i}")
    A(f"buffer_store_dwordx4 {v(112, 4)}, v{TXA}, s[{SOUT}:{SOUT+3}], 0 offen")
    A(f"buffer_store_dwordx4 {v(116, 4)}, v{TXA}, s[{SOUT}:{SOUT+3}], 0 offen offset:32")
    if prof:
        stamp()
        A("s_waitcnt vmcnt(0)")
        stamp()
        if prof == 2:
            A("v_writelane_b32 v0, s96, 0")
            A("v_writelane_b32 v0, s97, 1")
            A(f"s_cmp_lg_u32 s{S_W}, 0")
            A("s_cbranch_scc1 prof_skip")
            A("s_mov_b64 exec, 1")
            A("v_mov_b32 v2, s60")
            A("s_not_b32 s3, s97")
            A("v_mov_b32 v3, s3")
            A("v_mov_b32 v4, 0")
            A(f"global_atomic_umax v4, v2, s[{S_DBG}:{S_DBG+1}] offset:56")
            A(f"global_atomic_umax v4, v3, s[{S_DBG}:{S_DBG+1}] offset:60")
            A("s_mov_b64 exec, -1")
            A("s_cmp_lg_u32 s2, 0")
            A("s_cbranch_scc1 prof_skip")
            for i in range(nstamp[0]):
                A(f"v_readlane_b32 s3, v0, {2*i+1}")
                A("s_nop 3")
                A("s_sub_u32 s3, s3, s97")
                A(f"v_writelane_b32 v2, s3, {i}")
            A(f"v_lshrrev_b32 v1, 2, v{VL16}")
            A(f"s_mov_b64 exec, {(1 << nstamp[0]) - 1}")
            A(f"global_store_dword v1, v2, s[{S_DBG}:{S_DBG+1}]")
            A("s_mov_b64 exec, -1")
            A.label("prof_skip")
        A(f"s_lshl_b32 s3, s2, 2")
        A(f"s_add_u32 s3, s3, s{S_W}")
        A(f"s_lshl_b32 s3, s3, 8")
        A(f"s_add_u32 s3, s3, {PROF_OFF}")
        A("s_add_u32 s56, s56, s3")
        A("s_addc_u32 s57, s57, 0")
        A("v_writelane_b32 v0, s96, 0")
        A("v_writelane_b32 v0, s97, 1")
        A(f"v_lshrrev_b32 v1, 2, v{VL16}")
        A("global_store_dword v1, v0, s[56:57]")
        print("stamps", nstamp[0])
    A("s_endpgm")
    A.label("attn_fallback")
    A(f"""
    s_waitcnt vmcnt(0) lgkmcnt(0)
    s_mov_b32 s{S_MODE}, 1
    v_mov_b32 v24, 0xff800000
    v_mov_b32 v25, 0xff800000
    v_mov_b32 v26, 0xff800000
    v_mov_b32 v27, 0xff800000
    s_mov_b32 s{S_KOFF}, 0
    """)
    A.label("attn_fb_loop")
    A("s_barrier")
    for grp in kv_dma("k", 0, S_KOFF):
        pre, ins, tag = grp
        for pp in pre: A(pp)
        if pre: A.nop(1)
        A(ins)
    A("s_waitcnt vmcnt(0)")
    A("s_barrier")
    if M16:
        for sub in range(2):
            for t in range(8):
                kt, T = divmod(t, 4)
                A(kread(0, sub, t, t % 4))
                A("s_waitcnt lgkmcnt(0)")
                for q4 in range(4):
                    d = v(S0 + (kt*4 + q4)*4, 4)
                    A(mfma16(d, a(AK + 4*(t % 4), 4), v(q16(q4, T), 4), "0" if T == 0 else d))
            A.nop(10)
            for q4 in range(4):
                r = [S0 + (kt*4 + q4)*4 + i for kt in range(2) for i in range(4)]
                for i in range(0, 8, 2):
                    A(f"v_max3_f32 v{24+q4}, v{24+q4}, v{r[i]}, v{r[i+1]}")
            A.nop(4)
    else:
        for sub in range(2):
            for t in range(8):
                A(kread(0, sub, t, t % 4))
                A("s_waitcnt lgkmcnt(0)")
                for qt in range(2):
                    d = v(S0 + qt*16, 16)
                    A(mfma(d, a(AK + 4*(t % 4), 4), v(QF + qt*32 + t*4, 4), "0" if t == 0 else d))
            A.nop(14)
            for qt in range(2):
                b = S0 + qt*16; m = 24 + qt
                for i in range(0, 16, 2):
                    A(f"v_max3_f32 v{m}, v{m}, v{b+i}, v{b+i+1}")
            A.nop(2)
    A(f"""
    s_add_u32 s{S_KOFF}, s{S_KOFF}, 16384
    s_cmp_lt_u32 s{S_KOFF}, 0x80000
    s_cbranch_scc1 attn_fb_loop
    """)
    if M16:
        xlane_max16()
        for q4 in range(4):
            for i in range(4):
                A(f"v_sub_f32 v{NEGM + q4*4 + i}, 0, v{24+q4}")
    else:
        for qt in range(2):
            A(f"v_mov_b32 v{26+qt}, v{24+qt}")
        A.nop(2)
        for qt in range(2):
            A(f"v_permlane32_swap_b32 v{24+qt}, v{26+qt}")
        A.nop(1)
        for qt in range(2):
            A(f"v_max_f32 v{24+qt}, v{24+qt}, v{26+qt}")
        for qt in range(2):
            for i in range(16):
                A(f"v_sub_f32 v{NEGM + qt*16 + i}, 0, v{24+qt}")
    A("s_barrier")
    for grp in kv_dma("v", 0) + kv_dma("v", 1) + kv_dma("k", 0) + kv_dma("k", 1) + kv_dma("k", 2):
        pre, ins, tag = grp
        for pp in pre: A(pp)
        if pre: A.nop(1)
        A(ins)
    A("s_waitcnt vmcnt(0)")
    A("s_branch attn_go")
    A.label("main_done")
    A("s_endpgm")
    check_hazards(A.L, "f")
    for (ls, le) in loops:
        body = A.L[ls:le]
        check_hazards(body + body, "floop")
    return (L, 256, 256, 163840, A.text(), 512, 256)
```

```python
from gen_common import *

def gen_k1(opt=None):
    opt = opt or {}
    A = Asm()
    L = "ln_kernel"
    kernel_head(A, L)
    A("""
    s_cmp_ge_u32 s2, 256
    s_cbranch_scc1 ln_done
    s_load_dwordx2 s[4:5], s[0:1], 0
    s_load_dwordx2 s[6:7], s[0:1], 80
    v_and_b32 v1, 63, v0
    v_lshrrev_b32 v2, 6, v0          ; wave
    v_lshrrev_b32 v3, 5, v1
    v_lshl_add_u32 v3, v2, 1, v3     ; + 2*wave
    s_lshl_b32 s3, s2, 3
    v_add_u32 v3, s3, v3             ; row
    v_and_b32 v2, 31, v1             ; t = k-step
    v_lshlrev_b32 v28, 10, v3        ; row*1024
    v_lshl_add_u32 v28, v2, 5, v28   ; + t*32
    s_waitcnt lgkmcnt(0)
    global_load_dwordx4 v[4:7], v28, s[4:5]
    global_load_dwordx4 v[8:11], v28, s[4:5] offset:16
    """)
    if opt.get("k1pf", 0):
        A(f"""
        s_load_dwordx4 s[8:11], s[0:1], 8       ; K, V
        s_load_dwordx2 s[12:13], s[0:1], 24     ; Wq
        s_load_dwordx2 s[14:15], s[0:1], 48     ; W1
        v_lshrrev_b32 v32, 6, v0
        s_and_b32 s16, s2, 7
        v_readfirstlane_b32 s20, v32            ; wave
        s_lshr_b32 s17, s2, 3
        s_and_b32 s18, s17, 7                   ; j = q block
        s_lshr_b32 s17, s17, 3
        s_lshl_b32 s17, s17, 3
        s_add_u32 s17, s17, s16                 ; head
        s_waitcnt lgkmcnt(0)
        s_cmp_eq_u32 s20, 0
        s_cbranch_scc1 ln_pf0
        s_cmp_eq_u32 s20, 3
        s_cbranch_scc1 ln_pf3
        s_lshl_b32 s19, s18, 19
        s_lshl_b32 s21, s17, 8
        s_add_u32 s19, s19, s21
        s_sub_u32 s21, s20, 1
        s_lshl_b32 s21, s21, 7
        s_add_u32 s19, s19, s21
        v_lshlrev_b32 v33, 13, v1
        v_add_u32 v33, s19, v33
        global_load_dword v34, v33, s[12:13]
        s_branch ln_pfd
        ln_pf0:
        s_min_u32 s21, s17, 27
        s_lshl_b32 s21, s21, 7
        s_mul_i32 s19, s18, {64 * 3584}
        s_add_u32 s19, s19, s21
        v_mul_u32_u24 v33, 3584, v1
        v_add_u32 v33, s19, v33
        global_load_dword v34, v33, s[14:15]
        s_branch ln_pfd
        ln_pf3:
        s_lshl_b32 s19, s17, 19
        s_lshl_b32 s21, s18, 13
        s_add_u32 s19, s19, s21
        v_lshlrev_b32 v33, 7, v1
        v_add_u32 v33, s19, v33
        global_load_dword v34, v33, s[8:9]
        global_load_dword v35, v33, s[10:11]
        ln_pfd:
        """)
    A("""
    v_lshrrev_b32 v29, 5, v3         ; qtile
    v_lshlrev_b32 v29, 15, v29       ; *32768
    v_lshl_add_u32 v29, v2, 10, v29  ; + t*1024
    v_and_b32 v3, 31, v3
    v_lshl_add_u32 v29, v3, 4, v29   ; + (row%32)*16
    """)
    if opt.get("k1pf", 0):
        A("s_cmp_eq_u32 s20, 3")
        A("s_cbranch_scc1 ln_w2")
        A("s_waitcnt vmcnt(1)")
        A("s_branch ln_w3")
        A.label("ln_w2")
        A("s_waitcnt vmcnt(2)")
        A.label("ln_w3")
    else:
        A("s_waitcnt vmcnt(0)")
    for i in range(8):
        A(f"v_lshlrev_b32 v{12+2*i}, 16, v{4+i}")
        A(f"v_and_b32 v{13+2*i}, 0xffff0000, v{4+i}")
    def reduce32(r, t):
        for sh in (8, 4, 2, 1):
            A.nop(2)
            A(f"v_add_f32_dpp v{r}, v{r}, v{r} row_ror:{sh} row_mask:0xf bank_mask:0xf")
        A(f"v_mov_b32 v{t}, v{r}")
        A.nop(2)
        A(f"v_permlane16_swap_b32 v{r}, v{t}")
        A.nop(2)
        A(f"v_add_f32 v{r}, v{r}, v{t}")
    A("v_add_f32 v30, v12, v13")
    A("v_add_f32 v31, v14, v15")
    for i in range(2, 8):
        A(f"v_add_f32 v{30 + (i & 1)}, v{30 + (i & 1)}, v{12+2*i}")
        A(f"v_add_f32 v{30 + (i & 1)}, v{30 + (i & 1)}, v{13+2*i}")
    A("v_add_f32 v30, v30, v31")
    reduce32(30, 31)
    A(f"v_mul_f32 v30, {fhex(1.0/512)}, v30")
    for i in range(16):
        A(f"v_sub_f32 v{12+i}, v{12+i}, v30")
    A("v_mul_f32 v30, v12, v12")
    A("v_mul_f32 v31, v13, v13")
    for i in range(2, 16):
        A(f"v_fmac_f32 v{30 + (i & 1)}, v{12+i}, v{12+i}")
    A("v_add_f32 v30, v30, v31")
    reduce32(30, 31)
    A(f"v_mov_b32 v31, {fhex(1e-5)}")
    A(f"v_fmac_f32 v31, {fhex(1.0/512)}, v30")
    A("v_rsq_f32 v31, v31")
    A.nop(1)
    for i in range(16):
        A(f"v_mul_f32 v{12+i}, v{12+i}, v31")
    order = [0, 1, 4, 5, 2, 3, 6, 7]
    for j, d in enumerate(order):
        A(f"v_cvt_pk_bf16_f32 v{4+j}, v{12+2*d}, v{13+2*d}")
    A(f"""
    s_add_u32 s6, s6, {XN_OFF}
    s_addc_u32 s7, s7, 0
    global_store_dwordx4 v29, v[4:7], s[6:7]
    global_store_dwordx4 v29, v[8:11], s[6:7] offset:512
    """)
    A.label("ln_done")
    A("s_endpgm")
    check_hazards(A.L, "k1")
    return (L, 256, 256, 0, A.text(), 40, 40)
```

```python
from gen_common import *

VK = 2
VV = 10
VKD = 14
VVD = 18
VL16 = 19
LA, LB = 20, 22
WR1, WRL, WRH = 24, 26, 28
WD1, WDQ = 30, 31
QF = 32
S0 = 96
NEGM = 160
P0 = 192
WF = 224
TWF = 208
TWD0, TWD1, TWR0, TWR1, TXA = 232, 233, 234, 235, 236
TFW, TFR, TSW, TSR = 237, 240, 241, 242
THP, TOP, TOWN = 245, 246, 247
ACCF, ACCS = 96, 32
AO = 0
AK = 128
AV = 144
AB = 160
SK, SV, SWQ, SXN, SO, SW1, SH = 4, 8, 12, 16, 20, 24, 28
SW2, SWO, SHB, SOB, SX, SOUT = 12, 16, 24, 28, 64, 68
S_HEAD, S_QB, S_W, S_W4K, S_W2K, S_KOFF, S_VOFF, S_CNT, S_T0, S_T1, S_MODE = 32, 33, 34, 35, 36, 37, 38, 39, 40, 41, 42
S_T2 = 43
S_SCALE, S_NLOG2E = 46, 47
S_DBG = 62
S_QT, S_NB, S_RING, S_HQ, S_OQ, S_SPIN = 72, 73, 74, 75, 77, 79
S_PX, S_PWO, S_PW2, S_POUT = 84, 86, 88, 90
LDS_V = 65536
LDS_EX = 98304
LDS_VOTE = 147456
NF, NS = 28, 64
NK = NF + NS
RING = 12
DEPTH = 11
RINGB = RING * 2048


class DS:
    def __init__(self, A):
        self.A = A; self.ops = []; self.retired = 0
    def issue(self, txt, tag):
        self.A(txt); self.ops.append(tag)
    def wait(self, tag):
        last = -1
        for i, t in enumerate(self.ops):
            if t == tag: last = i
        assert last >= 0, tag
        n = len(self.ops) - 1 - last
        done = last + 1
        if done <= self.retired: return None
        n = min(n, 15)
        self.retired = len(self.ops) - n
        return f"s_waitcnt lgkmcnt({n})"
    def waitall(self):
        self.retired = len(self.ops)
        return "s_waitcnt lgkmcnt(0)"
    def pending(self):
        return self.ops[self.retired:]


def mfma(d, a_, b_, c_):
    return f"v_mfma_f32_32x32x16_bf16 {d}, {a_}, {b_}, {c_}"


def gen_f(opt=None):
    opt = opt or {}
    A = Asm()
    L = opt.get("label", "main_kernel")
    kernel_head(A, L)
    ds = DS(A)
    vm = VM(A)
    prof = opt.get("prof", 0)
    SC1 = " sc1" if opt.get("sc1", 1) else ""
    nstamp = [0]
    HOFF = 64 if prof == 2 else 0
    M16 = opt.get("m16", 0)
    global VV
    VV = 6 if M16 else 10
    VVD1 = 1
    ONES = 20
    LACC = NEGM + 16
    def stamp(first=False):
        if not prof: return
        i = nstamp[0]; nstamp[0] += 1
        A("s_memtime s[58:59]")
        A("s_memrealtime s[60:61]")
        A("s_waitcnt lgkmcnt(0)")
        if first:
            A("s_mov_b32 s96, s58")
            A("s_mov_b32 s97, s60")
        else:
            A(f"v_writelane_b32 v0, s58, {2*i}")
            A(f"v_writelane_b32 v0, s60, {2*i+1}")
    A(f"""
    s_cmp_ge_u32 s2, 256
    s_cbranch_scc1 main_done
    """)
    stamp(first=True)
    A(f"""
    s_load_dwordx4 s[48:51], s[0:1], 8      ; K, V
    s_load_dwordx2 s[52:53], s[0:1], 24     ; Wq
    s_load_dwordx2 s[54:55], s[0:1], 48     ; W1
    s_load_dwordx2 s[56:57], s[0:1], 80     ; ws
    s_load_dwordx2 s[{S_DBG}:{S_DBG+1}], s[0:1], 72
    s_load_dwordx2 s[{S_PX}:{S_PX+1}], s[0:1], 0
    s_load_dwordx2 s[{S_PWO}:{S_PWO+1}], s[0:1], 32
    s_load_dwordx4 s[{S_PW2}:{S_PW2+3}], s[0:1], 56    ; W2, out
    v_lshrrev_b32 v1, 6, v0
    v_and_b32 v0, 63, v0
    s_and_b32 s3, s2, 7                     ; xcd guess
    s_lshr_b32 s{S_T0}, s2, 3               ; i = 0..31
    v_readfirstlane_b32 s{S_W}, v1
    s_and_b32 s{S_NB}, s{S_T0}, 7           ; tail: n block
    """ + (f"s_xor_b32 s{S_NB}, s{S_NB}, {opt['nbx']}" if opt.get("nbx", 0) else "") + f"""
    s_lshr_b32 s{S_T1}, s{S_T0}, 3          ; i/8 = 0..3
    s_lshl_b32 s{S_QT}, s3, 2
    s_add_u32 s{S_QT}, s{S_QT}, s{S_T1}     ; tail: 64-row tile
    s_lshl_b32 s{S_T1}, s{S_T1}, 3
    s_add_u32 s{S_HEAD}, s{S_T1}, s3        ; head = x + 8*(i/8)
    s_and_b32 s{S_QB}, s{S_T0}, 7           ; q block
    s_lshl_b32 s{S_W4K}, s{S_W}, 12
    s_lshl_b32 s{S_W2K}, s{S_W}, 11
    s_mov_b32 s{S_SCALE}, {fhex(LOG2E * 128 ** -0.5)}
    s_mov_b32 s{S_NLOG2E}, {fhex(-LOG2E)}
    s_mov_b32 s{S_MODE}, 0
    """)
    HI, L16, G, R4, C, G2, T0, T1, T2 = 32, 33, 34, 35, 36, 37, 38, 39, 40
    A(f"""
    v_lshlrev_b32 v{VL16}, 4, v0            ; lane*16
    v_lshrrev_b32 v{HI}, 5, v0              ; hi
    v_and_b32 v{L16}, 15, v0                ; l%16
    v_lshrrev_b32 v{G}, 4, v0               ; g = l/16
    v_lshrrev_b32 v{R4}, 2, v{L16}          ; r4
    v_and_b32 v{C}, 3, v0                   ; c
    v_and_b32 v{G2}, 1, v{G}                ; g2
    ; W dma voffsets: (16w + l/8)*stride + ((l%8) ^ (g2<<2))*16
    v_lshrrev_b32 v1, 3, v0
    s_lshl_b32 s3, s{S_W}, 4
    v_add_u32 v1, s3, v1                    ; row
    v_and_b32 v{T0}, 7, v0
    v_lshlrev_b32 v{T1}, 2, v{G2}
    v_xor_b32 v{T0}, v{T0}, v{T1}
    v_lshlrev_b32 v{T0}, 4, v{T0}
    v_mul_u32_u24 v{T1}, 3584, v1
    v_add_u32 v{WD1}, v{T1}, v{T0}
    v_lshl_add_u32 v{WDQ}, v1, 13, v{T0}
    s_waitcnt lgkmcnt(0)
    """)
    A(f"""
    s_lshl_b32 s3, s{S_HEAD}, 8
    s_add_u32 s{SWQ}, s52, s3
    s_addc_u32 s{SWQ+1}, s53, 0
    s_sub_u32 s{SWQ+2}, {512*8192}, s3
    s_mov_b32 s{SWQ+3}, 0x20000
    s_min_u32 s3, s{S_HEAD}, 27
    s_lshl_b32 s3, s3, 7
    s_add_u32 s{SW1}, s54, s3
    s_addc_u32 s{SW1+1}, s55, 0
    s_sub_u32 s{SW1+2}, {512*3584}, s3
    s_mov_b32 s{SW1+3}, 0x20000
    s_lshl_b32 s{S_T0}, s{S_QB}, 3
    s_lshl_b32 s{S_T1}, s{S_W}, 1
    s_add_u32 s{S_T2}, s{S_T0}, s{S_T1}     ; first q tile of this wave
    s_lshl_b32 s3, s{S_T2}, 15
    s_add_u32 s3, s3, {XN_OFF}
    s_add_u32 s{SXN}, s56, s3
    s_addc_u32 s{SXN+1}, s57, 0
    s_mov_b32 s{SXN+2}, 0x10000
    s_mov_b32 s{SXN+3}, 0x20000
    s_lshl_b32 s3, s{S_T2}, 18
    s_lshl_b32 s{S_T1}, s{S_HEAD}, 13
    s_add_u32 s3, s3, s{S_T1}
    s_add_u32 s3, s3, {O_OFF}
    s_add_u32 s{SO}, s56, s3
    s_addc_u32 s{SO+1}, s57, 0
    s_mov_b32 s{SO+2}, {262144 + 8192}
    """ + (f"""
    s_bitcmp1_b32 s2, 6
    s_cselect_b32 s{SO+2}, 0, s{SO+2}
    """ if opt.get("hackb", 0) else "") + f"""
    s_mov_b32 s{SO+3}, 0x20000
    s_mul_i32 s3, s{S_T2}, 114688
    s_lshl_b32 s{S_T1}, s{S_HEAD}, 12
    s_add_u32 s3, s3, s{S_T1}
    s_add_u32 s3, s3, {H_OFF}
    s_add_u32 s{SH}, s56, s3
    s_addc_u32 s{SH+1}, s57, 0
    s_cmp_lt_u32 s{S_HEAD}, 28
    s_cselect_b32 s{SH+2}, {114688 + 4096}, 0
    s_mov_b32 s{SH+3}, 0x20000
    """)
    def unit(kind, st):
        if kind == "w1": return 12 + st if st < 4 else 8 + st - 4
        if kind == "ql": return 6 + st if st < 2 else st - 2
        return 16 + st if st < 4 else 12 + st - 4
    def w_dma(kind, st):
        lds = unit(kind, st) * 8192
        if kind == "w1": stride = 3584; base = st * 64 * stride; sr = SW1; vo = WD1
        else: stride = 8192; base = st * 64 * stride + (128 if kind == "qh" else 0); sr = SWQ; vo = WDQ
        g = []
        for i in range(2):
            pre = []
            if i == 0: pre.append(f"s_add_u32 m0, s{S_W2K}, {lds}")
            pre.append(f"s_mov_b32 s{S_T0}, {base + i * (8 * stride - 1024)}")
            g.append((pre, f"buffer_load_dwordx4 v{vo}, s[{sr}:{sr+3}], s{S_T0} offen offset:{i*1024} lds", (kind, st)))
        return g
    def xn_ld(st):
        g = []
        for qt in range(2):
            for kk in range(4):
                ks = st * 4 + kk
                pre = [f"s_mov_b32 s{S_T1}, {qt * 32768 + st * 4096}"] if kk == 0 else []
                g.append((pre, f"buffer_load_dwordx4 {a(qt*128 + ks*4, 4)}, v{VL16}, s[{SXN}:{SXN+3}], s{S_T1} offen offset:{kk*1024}", ("xn", st)))
        return g
    def kv_dma(kind, stage, soff=None):
        slot = stage % 4
        g = []
        lds = slot * 16384 + (LDS_V if kind == "v" else 0)
        sr = SK if kind == "k" else SV
        for i in range(4):
            pre = []
            if i == 0:
                pre.append(f"s_add_u32 m0, s{S_W4K}, {lds}")
                if soff is None:
                    pre.append(f"s_mov_b32 s{S_T2}, {stage * 16384}")
            so = S_T2 if soff is None else soff
            vo = VKD + i if kind == "k" else (VVD1 if (M16 and i % 2) else VVD)
            g.append((pre, f"buffer_load_dwordx4 v{vo}, s[{sr}:{sr+3}], s{so} offen offset:{i*1024} lds", (kind, stage)))
        return g
    def emit_vm(grp):
        pre, ins, tag = grp
        for p in pre: A(p)
        if pre and "m0" in pre[-1]: A.nop(1)
        vm.issue(ins, tag)

    q1 = []
    for st in range(8):
        q1 += w_dma("w1", st) + w_dma("ql", st) + xn_ld(st)
    for st in range(4): q1 += w_dma("qh", st)
    for _ in range(24): emit_vm(q1.pop(0))
    A(f"""
    s_lshl_b32 s3, s{S_HEAD}, 19
    s_add_u32 s{SK}, s48, s3
    s_addc_u32 s{SK+1}, s49, 0
    s_mov_b32 s{SK+2}, 0x80000
    s_mov_b32 s{SK+3}, 0x20000
    s_add_u32 s{SV}, s50, s3
    s_addc_u32 s{SV+1}, s51, 0
    s_mov_b32 s{SV+2}, 0x80000
    s_mov_b32 s{SV+3}, 0x20000
    """)
    if not M16:
        A(f"""
        ; K read base
        v_and_b32 v{T0}, 31, v0
        v_lshlrev_b32 v{T0}, 8, v{T0}
        v_xor_b32 v{T1}, v{HI}, v{L16}
        v_lshl_add_u32 v{VK}, v{T1}, 4, v{T0}
        """)
        for t in range(1, 8):
            A(f"v_xor_b32 v{VK+t}, {t << 5}, v{VK}")
        A(f"""
        v_lshl_add_u32 v{T0}, v{HI}, 2, v{R4}         ; 4hi + r4
        v_lshlrev_b32 v{T1}, 8, v{T0}
        v_lshl_add_u32 v{T1}, v{G2}, 5, v{T1}
        v_lshl_add_u32 v{T1}, v{C}, 3, v{T1}
        v_add_u32 v{T1}, {LDS_V}, v{T1}
        """)
        for dt in range(4):
            A(f"v_xor_b32 v1, {dt}, v{R4}")
            A(f"v_lshl_add_u32 v{VV+dt}, v1, 6, v{T1}")
    else:
        A(f"""
        v_lshl_add_u32 v{T0}, v{G2}, 1, v{HI}         ; cm(g)
        v_xor_b32 v{T0}, v{T0}, v{L16}
        v_lshlrev_b32 v{T0}, 4, v{T0}
        v_lshl_add_u32 v{VK}, v{L16}, 8, v{T0}
        """)
        for t in range(1, 4):
            A(f"v_xor_b32 v{VK+t}, {t << 6}, v{VK}")
        A(f"""
        v_and_b32 v{T0}, 1, v{R4}
        v_lshrrev_b32 v{T1}, 1, v{R4}
        v_lshl_add_u32 v{T0}, v{T1}, 2, v{T0}
        v_lshl_add_u32 v{T0}, v{G2}, 3, v{T0}         ; f
        v_and_b32 v{T1}, 2, v{C}
        v_xor_b32 v{T0}, v{T0}, v{T1}                 ; f ^ 2(c/2)
        v_lshlrev_b32 v{T0}, 4, v{T0}
        v_and_b32 v{T1}, 1, v{C}
        v_lshl_add_u32 v{T0}, v{T1}, 3, v{T0}
        v_lshl_add_u32 v{T1}, v{G}, 2, v{R4}          ; 4g + r4
        v_lshl_add_u32 v{T0}, v{T1}, 8, v{T0}
        v_add_u32 v{VV}, {LDS_V}, v{T0}
        """)
        for dt in range(1, 8):
            A(f"v_xor_b32 v{VV+dt}, {(4*(dt//2) + dt%2) << 4}, v{VV}")
        A(f"v_lshl_add_u32 v{T0}, v{HI}, 2, v{R4}         ; 4hi + r4 (W read addresses below)")
    A(f"""
    v_lshlrev_b32 v{T1}, 8, v{G}
    v_add_u32 v{T1}, s{S_W4K}, v{T1}
    """)
    for i in range(4):
        A(f"v_add_u32 v1, {4*i}, v{G}")
        A(f"v_xor_b32 v1, v1, v{L16}")
        A(f"v_lshl_add_u32 v{VKD+i}, v1, 4, v{T1}")
    if not M16:
        A(f"""
        v_lshlrev_b32 v1, 2, v{G}
        v_xor_b32 v1, v1, v{L16}
        v_lshl_add_u32 v{VVD}, v1, 4, v{T1}
        """)
    else:
        A(f"""
        v_lshl_add_u32 v1, v{HI}, 2, v{G2}
        v_xor_b32 v1, v1, v{L16}
        v_lshl_add_u32 v{VVD}, v1, 4, v{T1}
        """)
    A(f"""
    ; W read addrs: base + (4hi+r4)*128 + ((ct ^ (r4>>1))*64) + g2*32 + c*8  (sigma(c) for Wq)
    v_lshlrev_b32 v{T1}, 7, v{T0}
    v_lshl_add_u32 v{T1}, v{G2}, 5, v{T1}
    v_lshrrev_b32 v1, 1, v{R4}              ; r4>>1
    v_lshl_add_u32 v41, v1, 6, v{T1}        ; ct=0
    v_xor_b32 v1, 1, v1
    v_lshl_add_u32 v42, v1, 6, v{T1}        ; ct=1
    v_lshlrev_b32 v43, 3, v{C}              ; c*8
    v_add_u32 v43, {LDS_V}, v43
    v_add_u32 v{WR1}, v41, v43
    v_add_u32 v{WR1+1}, v42, v43
    v_and_b32 v1, 1, v{C}
    v_lshlrev_b32 v1, 1, v1
    v_lshrrev_b32 v43, 1, v{C}
    v_or_b32 v1, v1, v43                    ; sigma(c)
    v_lshlrev_b32 v43, 3, v1
    v_add_u32 v{WRL}, v41, v43
    v_add_u32 v{WRL+1}, v42, v43
    v_add_u32 v{WRH}, 98304, v{WRL}
    v_add_u32 v{WRH+1}, 98304, v{WRL+1}
    """)
    if M16: A(f"v_xor_b32 v{VVD1}, 128, v{VVD}")
    for _ in range(36): emit_vm(q1.pop(0))

    def wfrag(n, f):
        return WF + (n % 2) * 16 + f * 4 if n < 32 else WF + (n % 4) * 8 + f * 4
    def w_reads(n):
        ks = n % 32; st, kk = divmod(ks, 4)
        out = []
        for f in range(4 if n < 32 else 2):
            if n < 32 and f < 2: reg = WR1 + f; imm = (unit("w1", st) - 8) * 8192
            elif n < 32: reg = WRL + f - 2; imm = unit("ql", st) * 8192
            else: reg = WRH + f; imm = (unit("qh", st) - 12) * 8192
            for e2 in range(2):
                out.append((f"ds_read_b64_tr_b16 {v(wfrag(n, f) + 2*e2, 2)}, v{reg} offset:{imm + (16*kk + 8*e2) * 128}", ("w", n, f)))
        return out
    ACC = [32, 96, 160]
    def acc(p, ct, qt): return ACC[p] + (ct * 2 + qt) * 16
    fill = []
    def add_silu():
        for ct in range(2):
            for qt in range(2):
                for tp in range(2):
                    base = acc(0, ct, qt) + 8 * tp
                    for j in range(4):
                        x0, x1 = base + 2*j, base + 2*j + 1
                        ta, tb = (20, 21) if j % 2 == 0 else (22, 23)
                        fill.extend([
                            (f"v_mul_f32 v{ta}, s{S_NLOG2E}, v{x0}", 4),
                            (f"v_mul_f32 v{tb}, s{S_NLOG2E}, v{x1}", 4),
                            (f"v_exp_f32 v{ta}, v{ta}", 8),
                            (f"v_exp_f32 v{tb}, v{tb}", 8),
                            (f"v_add_f32 v{ta}, 1.0, v{ta}", 4),
                            (f"v_add_f32 v{tb}, 1.0, v{tb}", 4),
                            (f"v_rcp_f32 v{ta}, v{ta}", 8),
                            (f"v_rcp_f32 v{tb}, v{tb}", 8),
                            (f"v_mul_f32 v{x0}, v{x0}, v{ta}", 4),
                            (f"v_mul_f32 v{x1}, v{x1}, v{tb}", 4),
                            (f"v_cvt_pk_bf16_f32 v{base + j}, v{x0}, v{x1}", 4),
                        ])
                    fill.append(("HSTORE", base, ct, qt, tp))
    def add_qepi(p):
        half = p - 1
        for ct in range(2):
            for qt in range(2):
                for tp in range(2):
                    base = acc(p, ct, qt) + 8 * tp
                    t = half * 4 + ct * 2 + tp
                    for j in range(4):
                        x0, x1 = base + 2*j, base + 2*j + 1
                        fill.extend([
                            (f"v_mul_f32 v{x0}, s{S_SCALE}, v{x0}", 4),
                            (f"v_mul_f32 v{x1}, s{S_SCALE}, v{x1}", 4),
                            (f"v_cvt_pk_bf16_f32 v{QF + qt*32 + t*4 + j}, v{x0}, v{x1}", 4),
                        ])
                    if M16 and tp == 1:
                        for j in range(4):
                            fill.append((f"v_permlane16_swap_b32 v{QF + qt*32 + (t-1)*4 + j}, v{QF + qt*32 + t*4 + j}", 4))
    def pop_fill(budget):
        while fill and budget > 0:
            f = fill[0]
            if f[0] == "HSTORE":
                fill.pop(0)
                _, base, ct, qt, tp = f
                A(f"s_mov_b32 s{S_T1}, {qt * 114688}")
                vm.issue(f"buffer_store_dwordx4 {v(base, 4)}, v{VL16}, s[{SH}:{SH+3}], s{S_T1} offen offset:{(2*ct + tp) * 1024}{SC1}", ("h", 0))
                budget -= 12
                continue
            if f[1] > budget + 2: break
            fill.pop(0)
            A(f[0]); budget -= f[1]

    syncs = {}
    for st in range(1, 8): syncs[4*st - 1] = [("w1", st), ("ql", st), ("xn", st)]
    syncs[30] = [("qh", j) for j in range(4)]
    syncs[32] = []
    syncs[46] = [("qh", j) for j in range(4, 8)]
    vq = q1
    vm.wait([("w1", 0), ("ql", 0), ("xn", 0)])
    A("s_barrier")
    stamp()
    for (t, tag) in w_reads(0): ds.issue(t, tag)
    late_k = False
    for n in range(64):
        phA = n < 32
        ks = n % 32
        if n == 32: stamp()
        if n in syncs:
            assert not any(g[2] in syncs[n] for g in vq), (n, syncs[n])
            if syncs[n]: vm.wait(syncs[n])
            A("s_barrier")
        if n == 19:
            for st in range(4, 8): vq += w_dma("qh", st)
        if n == 32:
            assert not vq, vq
            vq += kv_dma("v", 0) + kv_dma("v", 1) + kv_dma("k", 0)
        if n == 33:
            add_silu(); add_qepi(1)
        if n > 33 and not late_k and not any(f[0] == "HSTORE" for f in fill):
            late_k = True
            vq += kv_dma("k", 1) + kv_dma("k", 2)
        if n < 31: rd = w_reads(n + 1)
        elif n == 31: rd = w_reads(32) + w_reads(33)
        elif n + 2 < 64: rd = w_reads(n + 2)
        else: rd = []
        i = 0
        for f in range(4 if phA else 2):
            w = ds.wait(("w", n, f))
            if w: A(w)
            p, ct = (divmod(f, 2) if phA else (2, f))
            for qt in range(2):
                d = v(acc(p, ct, qt), 16)
                if opt.get("h16p", 0):
                    b0 = acc(p, ct, qt) + 8 * (ks % 2)
                    for hh in range(2):
                        dd = v(b0 + 4*hh, 4)
                        A(f"v_mfma_f32_16x16x32_bf16 {dd}, {v(wfrag(n, f), 4)}, {a(qt*128 + ks*4, 4)}, {'0' if ks < 2 else dd}")
                else:
                    A(mfma(d, v(wfrag(n, f), 4), a(qt*128 + ks*4, 4), "0" if ks == 0 else d))
                if rd:
                    t, tag = rd.pop(0); ds.issue(t, tag)
                budget = opt.get("fbud", 20)
                if vq and vm.outstanding() < 62 and i % 2 == 0:
                    emit_vm(vq.pop(0)); budget -= 10
                pop_fill(budget)
                i += 1
        assert not rd
    assert late_k
    while vq: emit_vm(vq.pop(0))
    while fill: pop_fill(1000)
    A.nop(12)
    add_qepi(2)
    while fill: pop_fill(1000)

    tail_setup = []
    TL2 = opt.get("tail2", 0)
    assert not TL2 or M16
    OVO, TWX0, TWX1, TPOLL = 248, 249, 250, 251
    EXB = 81920 if TL2 else LDS_EX
    VOTE = 65536 if TL2 else LDS_VOTE
    def ts(txt):
        tail_setup.append([l.strip() for l in txt.strip().split("\n") if l.strip()])
    ts(f"""
    s_mul_i32 s{S_RING}, s{S_W}, {2048 if TL2 else RINGB}
    s_lshl_b32 s{S_T0}, s{S_NB}, 7
    s_mul_i32 s3, s{S_W}, {NF * 16384}
    s_add_u32 s3, s3, s{S_T0}
    s_add_u32 s{SW2}, s{S_PW2}, s3
    s_addc_u32 s{SW2+1}, s{S_PW2+1}, 0
    s_sub_u32 s{SW2+2}, {1792 * 1024}, s3
    s_mov_b32 s{SW2+3}, 0x20000
    s_mul_i32 s3, s{S_W}, {NS * 16384}
    s_add_u32 s3, s3, s{S_T0}
    s_add_u32 s{SWO}, s{S_PWO}, s3
    s_addc_u32 s{SWO+1}, s{S_PWO+1}, 0
    s_sub_u32 s{SWO+2}, {4096 * 1024}, s3
    s_mov_b32 s{SWO+3}, 0x20000
    """)
    ts(f"""
    s_mul_i32 s3, s{S_QT}, {2 * 114688}
    s_mul_i32 s{S_T1}, s{S_W}, {NF * 1024}
    s_add_u32 s3, s3, s{S_T1}
    s_add_u32 s3, s3, {H_OFF}
    s_add_u32 s{SHB}, s56, s3
    s_addc_u32 s{SHB+1}, s57, 0
    s_sub_u32 s{SHB+2}, {2 * 114688}, s{S_T1}
    s_mov_b32 s{SHB+3}, 0x20000
    s_lshl_b32 s3, s{S_QT}, 19
    s_lshl_b32 s{S_T1}, s{S_W}, 16
    s_add_u32 s3, s3, s{S_T1}
    s_add_u32 s3, s3, {O_OFF}
    s_add_u32 s{SOB}, s56, s3
    s_addc_u32 s{SOB+1}, s57, 0
    s_sub_u32 s{SOB+2}, {2 * 262144}, s{S_T1}
    s_mov_b32 s{SOB+3}, 0x20000
    """)
    ts(f"""
    s_lshl_b32 s3, s{S_QT}, 16
    s_add_u32 s3, s3, s{S_T0}
    s_add_u32 s{SX}, s{S_PX}, s3
    s_addc_u32 s{SX+1}, s{S_PX+1}, 0
    s_sub_u32 s{SX+2}, {2048 * 1024}, s3
    s_mov_b32 s{SX+3}, 0x20000
    s_add_u32 s{SOUT}, s{S_POUT}, s3
    s_addc_u32 s{SOUT+1}, s{S_POUT+1}, 0
    s_sub_u32 s{SOUT+2}, {2048 * 1024}, s3
    s_mov_b32 s{SOUT+3}, 0x20000
    s_and_b32 s3, s{S_W}, 1
    s_mul_i32 s{S_HQ}, s3, 114688
    s_sub_u32 s{S_HQ+1}, 114688, s{S_HQ}
    s_lshl_b32 s{S_OQ}, s3, 18
    s_sub_u32 s{S_OQ+1}, 262144, s{S_OQ}
    """)
    ts(f"""
    v_lshrrev_b32 v24, 4, v{VL16}
    v_lshrrev_b32 v25, 5, v24
    v_bfe_u32 v26, v24, 4, 1
    v_bfe_u32 v27, v24, 2, 2
    v_and_b32 v28, 3, v24
    v_lshrrev_b32 v29, 3, v24
    v_and_b32 v30, 7, v24
    v_lshlrev_b32 v31, 2, v26
    v_xor_b32 v30, v30, v31
    v_lshlrev_b32 v30, 4, v30
    v_lshl_add_u32 v{TWD0}, v29, 10, v30
    v_add_u32 v{TWD1}, {8192 - 1024}, v{TWD0}
    """)
    ts(f"""
    v_lshl_add_u32 v29, v25, 2, v27
    v_lshlrev_b32 v29, 7, v29
    v_lshl_add_u32 v29, v26, 5, v29
    v_add_u32 v29, s{S_RING}, v29
    v_and_b32 v30, 1, v28
    v_lshlrev_b32 v30, 1, v30
    v_lshrrev_b32 v31, 1, v28
    v_or_b32 v30, v30, v31
    v_lshl_add_u32 v29, v30, 3, v29
    v_lshrrev_b32 v30, 1, v27
    s_lshr_b32 s3, s{S_W}, 1
    v_xor_b32 v30, s3, v30
    v_lshl_add_u32 v{TWR0}, v30, 6, v29
    v_xor_b32 v30, 1, v30
    v_lshl_add_u32 v{TWR1}, v30, 6, v29
    """ + (f"""
    v_add_u32 v{TWX0}, 0x20000, v{TWR0}
    v_add_u32 v{TWX1}, 0x20000, v{TWR1}
    v_and_b32 v{OVO}, 0xf0, v{VL16}
    v_and_b32 v29, 0x300, v{VL16}
    v_lshl_add_u32 v{OVO}, v29, 1, v{OVO}
    """ if TL2 else ""))
    ts(f"""
    v_and_b32 v29, 31, v24
    s_and_b32 s3, s{S_W}, 1
    s_lshl_b32 s3, s3, 5
    v_add_u32 v29, s3, v29
    v_lshlrev_b32 v29, 10, v29
    v_lshl_add_u32 v29, v25, 4, v29
    s_lshr_b32 s3, s{S_W}, 1
    s_lshl_b32 s3, s3, 6
    v_add_u32 v{TXA}, s3, v29
    s_mul_i32 s3, s{S_W}, {3 * 4096}
    s_add_u32 s3, s3, {EXB}
    v_add_u32 v{TFR}, s3, v{VL16}
    v_add_u32 v{TSW}, s{S_RING}, v{VL16}
    """)
    x = ""
    for j in (1, 2, 3):
        x += f"""
        s_xor_b32 s3, s{S_W}, {j}
        s_mul_i32 s{S_T1}, s3, {3 * 4096}
        s_add_u32 s{S_T1}, s{S_T1}, {EXB + (j - 1) * 4096}
        v_add_u32 v{TFW + j - 1}, s{S_T1}, v{VL16}
        s_mul_i32 s{S_T1}, s3, {2048 if TL2 else RINGB}
        s_add_u32 s{S_T1}, s{S_T1}, {0 if TL2 else (j - 1) * 4096}
        v_add_u32 v{TSR + j - 1}, s{S_T1}, v{VL16}
        """
    ts(x)
    ts(f"""
    s_lshr_b32 s3, s{S_QT}, 2
    s_lshl_b32 s{S_T1}, s3, 2
    s_add_u32 s{S_T1}, s{S_T1}, {HOFF}
    v_mov_b32 v{THP}, s{S_T1}
    s_lshl_b32 s{S_T1}, s3, 4
    s_add_u32 s{S_T1}, s{S_T1}, 128
    v_mov_b32 v{TOP}, s{S_T1}
    s_lshl_b32 s{S_T1}, s{S_QB}, 4
    s_add_u32 s{S_T1}, s{S_T1}, 128
    v_mov_b32 v{TOWN}, s{S_T1}
    """)
    assert len(tail_setup) == 8

    def w_slot_addr(m):
        sl = m % RING
        return 131072 + sl * 8192 if sl < 4 else (sl - 4) * 8192
    def t2_w(m):
        f = m < NF
        ks = m if f else m - NF
        sw = SW2 if f else SWO
        return [([f"s_add_u32 m0, s{S_RING}, {w_slot_addr(m)}", f"s_mov_b32 s{S_T0}, {ks * 16384}"],
                 f"buffer_load_dwordx4 v{TWD0}, s[{sw}:{sw+3}], s{S_T0} offen lds", ("w", m)),
                ([], f"buffer_load_dwordx4 v{TWD1}, s[{sw}:{sw+3}], s{S_T0} offen offset:1024 lds", ("w", m))]
    EPI = [(0, 0, 3), (0, 1, 5), (1, 0, 5), (1, 1, 5), (0, 2, 7), (1, 2, 7), (2, 0, 7), (2, 1, 7), (2, 2, 7),
           (0, 3, 9), (1, 3, 9), (2, 3, 9), (3, 0, 9), (3, 1, 9), (3, 2, 9), (3, 3, 9)]
    def o_tile(dt, q4): return AO + (dt * 4 + q4) * 4
    def t2_bdst(m, qs):
        if m < 12: return AB + m * 8 + qs * 4
        if m < 14: return AK + (m - 12) * 8 + qs * 4
        if m < NF:
            q4, u, _ = EPI[m - 14]
            return o_tile(2 * u + qs, q4)
        return AB + ((m - NF) % RING) * 8 + qs * 4
    def t2_b(m):
        f = m < NF
        ks = m if f else m - NF
        sb = SHB if f else SOB
        sq = S_HQ if f else S_OQ
        return [([f"s_add_u32 s{S_T1}, s{sq + qs}, {ks * 1024}"],
                 f"buffer_load_dwordx4 {a(t2_bdst(m, qs), 4)}, v{VL16}, s[{sb}:{sb+3}], s{S_T1} offen{SC1}", ("b", m)) for qs in range(2)]

    def kread(slot, sub, t, ring):
        if M16:
            kt, T = divmod(t, 4)
            return (f"ds_read_b128 {a(AK + 4*ring, 4)}, v{VK+T} offset:{slot*16384 + sub*8192 + kt*4096}")
        return (f"ds_read_b128 {a(AK + 4*ring, 4)}, v{VK+t} offset:{slot*16384 + sub*8192}")
    def vread(slot, sub, g, ring):
        if M16:
            o = slot*16384 + sub*8192
            return [f"ds_read_b64_tr_b16 {a(AV + 4*ring, 2)}, v{VV+g} offset:{o}",
                    f"ds_read_b64_tr_b16 {a(AV + 4*ring + 2, 2)}, v{VV+g} offset:{o + 4096}"]
        u, dt = divmod(g, 4)
        o = slot*16384 + sub*8192 + u*4096
        return [f"ds_read_b64_tr_b16 {a(AV + 4*ring, 2)}, v{VV+dt} offset:{o}",
                f"ds_read_b64_tr_b16 {a(AV + 4*ring + 2, 2)}, v{VV+dt} offset:{o + 2048}"]
    state = {"pend": [], "dma": [], "uid": 0, "track": False}
    def reads_for(desc, g):
        uid, qk, pv = desc
        out = []
        if qk: out.append((kread(qk[0], qk[1], g, g % 4), ("k", uid, g)))
        if pv:
            r = vread(pv[0], pv[1], g, g % 4)
            out += [(r[0], ("v", uid, g)), (r[1], ("v", uid, g))]
        return out
    def mkdesc(qk, pv):
        state["uid"] += 1
        return (state["uid"], qk, pv)

    def mfma16(d, a_, b_, c_):
        return f"v_mfma_f32_16x16x32_bf16 {d}, {a_}, {b_}, {c_}"
    def q16(q4, T): return QF + (q4 // 2) * 32 + (2 * T + q4 % 2) * 4
    def emit_dma_item(grp):
        if state["track"]: emit_vm(grp)
        else:
            pre, ins, tag = grp
            for pp in pre: A(pp)
            if pre and "m0" in pre[-1]: A.nop(1)
            A(ins)
    def step16(desc, nxt, par, sm, cneg, first_pv, sync, extra, dma_every):
        uid, qk, pv = desc
        Sq = S0 + (1 - par) * 32
        Ss = S0 + par * 32
        Pw = P0 + par * 16
        Pr = P0 + (1 - par) * 16
        for g in range(8):
            mf = []
            if qk:
                kt, T = divmod(g, 4)
                for q4 in range(4):
                    d = v(Sq + (kt*4 + q4)*4, 4)
                    c = d if T > 0 else (v(NEGM + q4*4, 4) if cneg else "0")
                    mf.append(mfma16(d, a(AK + 4*(g % 4), 4), v(q16(q4, T), 4), c))
            if pv:
                for q4 in range(4):
                    d = a(AO + (g*4 + q4)*4, 4)
                    mf.append(mfma16(d, a(AV + 4*(g % 4), 4), v(Pr + q4*4, 4), "0" if first_pv else d))
                if g % 2 == 1:
                    q4 = g // 2
                    d = v(LACC + q4*4, 4)
                    mf.append(mfma16(d, v(ONES, 4), v(Pr + q4*4, 4), "0" if first_pv else d))
            ng = len(mf)
            rd = reads_for(desc, g + 2) if g < 6 else (reads_for(nxt, g - 6) if nxt else [])
            dsr = [("ds", t, tag) for (t, tag) in rd]
            pend = state["pend"]
            newpend = []
            if sm:
                kt, q4 = divmod(g, 4)
                r = [Ss + (kt*4 + q4)*4 + i for i in range(4)]
                pw = Pw + q4*4 + kt*2
                ex = [f"v_exp_f32 v{x}, v{x}" for x in r]
                cv = [f"v_cvt_pk_bf16_f32 v{pw}, v{r[0]}, v{r[1]}", f"v_cvt_pk_bf16_f32 v{pw+1}, v{r[2]}, v{r[3]}"]
                newpend = [cv[1]]
            G = [[] for _ in range(ng)]
            free = []
            if ng >= 8 and sm:
                d_ = dsr + [None] * (3 - len(dsr)); p_ = pend[0] if pend else None
                G[0] = [ex[0]]; G[1] = [d_[0], d_[1]]; G[2] = [ex[1]]; G[3] = [d_[2], p_]
                G[4] = [ex[2]]; G[5] = [cv[0]]; G[6] = [ex[3]]
                G = [[x for x in l if x] for l in G]
                free = [5, 7] + ([8] if ng == 9 else [])
                dpos = opt.get("dp16", 0)
                if dpos == 0: slots = [7] if ng == 8 else [7, 8]
                elif dpos == 1: slots = [5, 7] if ng == 8 else [7, 8]
                elif dpos == 2: slots = [] if ng == 8 else [7, 8]
                else: slots = [7]
            else:
                d_ = dsr + [None] * (3 - len(dsr)); p_ = pend[0] if pend else None
                if sm: seq = [ex[0], d_[0], ex[1], p_, d_[1], ex[2], d_[2], cv[0], ex[3]]
                else: seq = [d_[0], p_, d_[1], d_[2]]
                seq = [x for x in seq if x]
                per = -(-len(seq) // ng) if seq else 1
                for k, x in enumerate(seq): G[min(k // per, ng - 1)].append(x)
                slots = list(range(ng))
            if state.get("rate") is not None:
                state["acc"] = state.get("acc", 0.0) + state["rate"]
                k = int(state["acc"] + 1e-9); state["acc"] -= k
                pref = ([7, 5] + ([8] if ng == 9 else []) + [3, 1]) if ng >= 8 else ([ng - 1, ng - 2, 1, 0] if ng >= 4 else list(range(ng)))
                pref = list(dict.fromkeys(pref))
                slots = pref[:k]
            state["pend"] = newpend
            w = None
            tags = ([("k", uid, g)] if qk else []) + ([("v", uid, g)] if pv else [])
            for t in tags:
                x = ds.wait(t)
                if x: w = x
            if w: A(w)
            pre_sync = (g == 6 and sync is not None)
            for i, m in enumerate(mf):
                A(m)
                if i == 0 and pre_sync:
                    sync()
                for x in G[i]:
                    if isinstance(x, tuple): ds.issue(x[1], x[2])
                    else: A(x)
                if state["dma"] and (i in slots or dma_every):
                    emit_dma_item(state["dma"].pop(0))
                if extra and i == ng - 1:
                    for x in extra.pop(0): A(x)
                if state.get("filler"): state["filler"](g, i, ng)

    def step(desc, nxt, par, sm, cneg=True, first_pv=False, sync=None, extra=None, dma_every=False, gbase=None):
        uid, qk, pv = desc
        Sq = S0 + (1 - par) * 32
        Ss = S0 + par * 32
        Pw = P0 + par * 16
        Pr = P0 + (1 - par) * 16
        extra = list(extra or [])
        if M16:
            step16(desc, nxt, par, sm, cneg, first_pv, sync, extra, dma_every)
            assert not extra
            return
        for g in range(8):
            tags = []
            if qk: tags.append(("k", uid, g))
            if pv: tags.append(("v", uid, g))
            w = None
            for t in tags:
                x = ds.wait(t)
                if x: w = x
            if w: A(w)
            mf = []
            if qk:
                for qt in range(2):
                    d = v(Sq + qt*16, 16)
                    c = d if g > 0 else (v(NEGM + qt*16, 16) if cneg else "0")
                    mf.append(mfma(d, a(AK + 4*(g % 4), 4), v(QF + qt*32 + g*4, 4), c))
            if pv:
                u, dt = divmod(g, 4)
                for qt in range(2):
                    d = a(AO + qt*64 + dt*16, 16)
                    c = "0" if (first_pv and u == 0) else d
                    mf.append(mfma(d, a(AV + 4*(g % 4), 4), v(Pr + qt*8 + u*4, 4), c))
            rd = reads_for(desc, g + 2) if g < 6 else (reads_for(nxt, g - 6) if nxt else [])
            ng = len(mf)
            pre_sync = (g == 6 and sync is not None)
            if sm:
                qt, k4 = divmod(g, 4)
                r = [Ss + qt*16 + 4*k4 + i for i in range(4)]
                l = LA if qt == 0 else LB
                pw = Pw + qt*8 + 2*k4
                ex = [f"v_exp_f32 v{x}, v{x}" for x in r]
                newpend = [f"v_add_f32 v{l}, v{l}, v{r[3]}", f"v_cvt_pk_bf16_f32 v{pw+1}, v{r[2]}, v{r[3]}"]
            else:
                ex = []; newpend = []
            pend = state["pend"]
            if ng == 4:
                G = [[], [], [], []]
                if sm:
                    G[0] = [ex[0]]; G[1] = [ex[1]]; G[2] = [ex[2]]; G[3] = [ex[3]]
                for i, (t, tag) in enumerate(rd): G[min(i, 2)].append(("ds", t, tag))
                G[0] += pend
                if sm:
                    G[1].append(f"v_add_f32 v{l}, v{l}, v{r[0]}")
                    G[2].append(f"v_add_f32 v{l}, v{l}, v{r[1]}")
                    G[2].append(f"v_cvt_pk_bf16_f32 v{pw}, v{r[0]}, v{r[1]}")
                    G[3].append(f"v_add_f32 v{l}, v{l}, v{r[2]}")
            else:
                G = [[], []]
                if sm:
                    G[0] = [ex[0], ex[1]]; G[1] = [ex[2], ex[3]]
                for i, (t, tag) in enumerate(rd): G[min(i, 1)].append(("ds", t, tag))
                G[0] += pend
                if sm:
                    G[0].append(f"v_add_f32 v{l}, v{l}, v{r[0]}")
                    G[1].append(f"v_add_f32 v{l}, v{l}, v{r[1]}")
                    G[1].append(f"v_cvt_pk_bf16_f32 v{pw}, v{r[0]}, v{r[1]}")
                    G[1].append(f"v_add_f32 v{l}, v{l}, v{r[2]}")
            state["pend"] = newpend
            for i, m in enumerate(mf):
                A(m)
                if i == 0 and pre_sync:
                    sync()
                for x in G[i]:
                    if isinstance(x, tuple): ds.issue(x[1], x[2])
                    else: A(x)
                if gbase is not None and state.get("dpos") is not None:
                    go = ((gbase + 4 * g + i - 56) % 64) in state["dpos"]
                else:
                    go = (i % 2 == 1 or ng == 2 or dma_every)
                if state["dma"] and go:
                    grp = state["dma"].pop(0)
                    if state["track"]: emit_vm(grp)
                    else:
                        pre, ins, tag = grp
                        for pp in pre: A(pp)
                        if pre and "m0" in pre[-1]: A.nop(1)
                        A(ins)
                if extra and i == ng - 1:
                    for x in extra.pop(0): A(x)
        assert not extra

    def issue_next(s, poll=False):
        assert not state["dma"]
        k = kv_dma("k", s + 3, S_KOFF)
        x = kv_dma("v", s + 2, S_VOFF)
        k[0] = ([f"s_add_u32 s{S_KOFF}, s{S_KOFF}, 16384", f"s_add_u32 s{S_VOFF}, s{S_VOFF}, 16384"] + k[0][0], k[0][1], k[0][2])
        state["dma"] = k + x
        if poll:
            A(f"global_load_dword v24, v{THP}, s[{S_DBG}:{S_DBG+1}] sc1")
    def sync_fn(cnt, s, issue=True, post=None, poll=False):
        def f():
            if callable(cnt): cnt()
            else: A(f"s_waitcnt vmcnt({cnt})")
            A("s_barrier")
            if post: post()
            if issue: issue_next(s, poll)
        return f
    uniq = [0]
    def one_lane_atomic(voff, guard_mode):
        uniq[0] += 1
        lab = f"atom_skip{uniq[0]}"
        A(f"s_cmp_lg_u32 s{S_W}, 0")
        A(f"s_cbranch_scc1 {lab}")
        if guard_mode:
            A(f"s_cmp_lg_u32 s{S_MODE}, 0")
            A(f"s_cbranch_scc1 {lab}")
        A("v_mov_b32 v25, 1")
        A("s_mov_b64 exec, 1")
        A(f"global_atomic_add v{voff}, v25, s[{S_DBG}:{S_DBG+1}]")
        A("s_mov_b64 exec, -1")
        A.label(lab)
    def spin(voff, name, have_first, first=24):
        A(f"s_mov_b32 s{S_SPIN}, 0x10000")
        if have_first:
            A(f"v_readfirstlane_b32 s3, v{first}")
            A("s_nop 3")
            A("s_cmp_ge_u32 s3, 32")
            A(f"s_cbranch_scc1 {name}_ok")
        A.label(f"{name}_loop")
        A(f"global_load_dword v24, v{voff}, s[{S_DBG}:{S_DBG+1}] sc1")
        A("s_waitcnt vmcnt(0)")
        A("v_readfirstlane_b32 s3, v24")
        A("s_nop 3")
        A("s_cmp_ge_u32 s3, 32")
        A(f"s_cbranch_scc1 {name}_ok")
        A(f"s_sub_u32 s{S_SPIN}, s{S_SPIN}, 1")
        A(f"s_cbranch_scc1 {name}_ok")
        A("s_sleep 2")
        A(f"s_branch {name}_loop")
        A.label(f"{name}_ok")

    stamp()
    A.label("attn_go")
    vm.wait([("k", 0)])
    A(f"""
    s_barrier
    s_mov_b32 s{S_KOFF}, {2*16384}
    s_mov_b32 s{S_VOFF}, {1*16384}
    """)
    if M16:
        for i in range(4): A(f"v_mov_b32 v{ONES+i}, 0x3f803f80")
    else:
        A(f"v_mov_b32 v{LA}, 0")
        A(f"v_mov_b32 v{LB}, 0")
    d_m1 = mkdesc((0, 0), None)
    d_0 = mkdesc((0, 1), None)
    for g in (0, 1):
        for (t, tag) in reads_for(d_m1, g): ds.issue(t, tag)
    step(d_m1, d_0, par=1, sm=False, cneg=False, extra=tail_setup)
    A.nop(12)
    A(f"s_cmp_lg_u32 s{S_MODE}, 0")
    A("s_cbranch_scc1 attn_have_max")
    def xlane_max16():
        for swp in ("v_permlane16_swap_b32", "v_permlane32_swap_b32"):
            for q4 in range(4): A(f"v_mov_b32 v{28+q4}, v{24+q4}")
            A.nop(1)
            for q4 in range(4): A(f"{swp} v{24+q4}, v{28+q4}")
            A.nop(1)
            for q4 in range(4): A(f"v_max_f32 v{24+q4}, v{24+q4}, v{28+q4}")
    if M16:
        for q4 in range(4):
            r = [S0 + (kt*4 + q4)*4 + i for kt in range(2) for i in range(4)]
            m = 24 + q4
            A(f"v_max3_f32 v{m}, v{r[0]}, v{r[1]}, v{r[2]}")
            A(f"v_max3_f32 v{m}, v{m}, v{r[3]}, v{r[4]}")
            A(f"v_max3_f32 v{m}, v{m}, v{r[5]}, v{r[6]}")
            A(f"v_max_f32 v{m}, v{m}, v{r[7]}")
        xlane_max16()
        for q4 in range(4):
            A(f"v_add_f32 v{24+q4}, {fhex(float(opt.get('off', 96)))}, v{24+q4}")
        for q4 in range(4):
            for i in range(4):
                A(f"v_sub_f32 v{NEGM + q4*4 + i}, 0, v{24+q4}")
        A.label("attn_have_max")
        for kt in range(2):
            for q4 in range(4):
                for i in range(4):
                    x = S0 + (kt*4 + q4)*4 + i
                    A(f"v_add_f32 v{x}, v{x}, v{NEGM + q4*4 + i}")
        A.nop(2)
    else:
        for qt in range(2):
            b = S0 + qt*16; m = 24 + qt
            A(f"v_max3_f32 v{m}, v{b}, v{b+1}, v{b+2}")
            for i in range(3, 15, 2):
                A(f"v_max3_f32 v{m}, v{m}, v{b+i}, v{b+i+1}")
            A(f"v_max_f32 v{m}, v{m}, v{b+15}")
        for qt in range(2):
            A(f"v_mov_b32 v{26+qt}, v{24+qt}")
        A.nop(2)
        for qt in range(2):
            A(f"v_permlane32_swap_b32 v{24+qt}, v{26+qt}")
        A.nop(1)
        for qt in range(2):
            A(f"v_max_f32 v{24+qt}, v{24+qt}, v{26+qt}")
            A(f"v_add_f32 v{24+qt}, {fhex(float(opt.get('off', 96)))}, v{24+qt}")
        for qt in range(2):
            for i in range(16):
                A(f"v_sub_f32 v{NEGM + qt*16 + i}, 0, v{24+qt}")
        A.label("attn_have_max")
        for qt in range(2):
            for i in range(16):
                A(f"v_add_f32 v{S0 + qt*16 + i}, v{S0 + qt*16 + i}, v{NEGM + qt*16 + i}")
        A.nop(2)
    def mac(s):
        ks, vs = (s + 1) % 4, s % 4
        last = (s == 31)
        return (mkdesc(None if last else (ks, 0), (vs, 0)), mkdesc(None if last else (ks, 1), (vs, 1)))
    m0 = mac(0)
    def post0():
        A(f"s_lshl_b32 s3, s{S_QB}, 2")
        if HOFF: A(f"s_add_u32 s3, s3, {HOFF}")
        A("v_mov_b32 v24, s3")
        one_lane_atomic(24, guard_mode=True)
    assert vm.count_after([("h", 0)]) >= vm.count_after([("k", 1)])
    if TL2:
        assert not state["dma"]
        for m in range(4): state["dma"] += t2_w(m)
        state["track"] = True
    def wait_d0():
        vm.wait([("k", 1), ("v", 0)])
        state["track"] = False
    step(d_0, m0[0], par=0, sm=True, sync=sync_fn(wait_d0, 0, post=post0))
    def macro(m, mnext, s, first=False, sync=None, dma_every=False):
        step(m[0], m[1], par=1, sm=True, first_pv=first, dma_every=dma_every, gbase=0)
        step(m[1], mnext[0], par=0, sm=True, sync=sync, dma_every=dma_every, gbase=32)
    m1 = mac(1)
    dmode = opt.get("dmode", 0)
    def dpos_for(w):
        if dmode == 0: return None
        d0, dstep, dw = opt.get("d0", 1), opt.get("dstep", 8), opt.get("dw", 2)
        return {d0 + dw * w + dstep * j for j in range(8)}
    state["dpos"] = dpos_for(0)
    macro(m0, m1, 0, first=True, sync=sync_fn(8, 1))
    stamp()
    A(f"s_mov_b32 s{S_CNT}, 7")
    entry_pend = [t[0] for t in ds.pending()]
    entry_state = (list(state["pend"]), [x[1] for x in state["dma"]])
    nvar = 4 if dmode == 2 else 1
    ms = [m1] + [mac(s) for s in (2, 3, 4, 5)]
    if nvar > 1:
        for w in range(1, nvar):
            A(f"s_cmp_eq_u32 s{S_W}, {w}")
            A(f"s_cbranch_scc1 attn_loop{w}")
    saved = (list(ds.ops), ds.retired, list(state["pend"]), list(state["dma"]))
    loops = []
    for w in range(nvar):
        ds.ops, ds.retired = list(saved[0]), saved[1]
        state["pend"], state["dma"] = list(saved[2]), list(saved[3])
        state["dpos"] = dpos_for(w)
        A.label(f"attn_loop{w}" if w else "attn_loop")
        loop_start = len(A.L)
        for i in range(4):
            macro(ms[i], ms[i+1], 1 + i, sync=sync_fn(8, 2 + i, poll=(TL2 and i == 2)))
        assert [t[0] for t in ds.pending()] == entry_pend
        assert entry_state == (list(state["pend"]), [x[1] for x in state["dma"]]), (entry_state, state)
        A(f"s_sub_u32 s{S_CNT}, s{S_CNT}, 1")
        A(f"s_cmp_lg_u32 s{S_CNT}, 0")
        A(f"s_cbranch_scc1 attn_loop{w if w else ''}")
        loops.append((loop_start, len(A.L)))
        if w != nvar - 1: A("s_branch attn_loop_done")
    A.label("attn_loop_done")
    state["dpos"] = dpos_for(0)
    stamp()

    def t_loads(n, want="wb"):
        f = n < NF
        ks = n if f else n - NF
        sw = SW2 if f else SWO
        sb = SHB if f else SOB
        sq = S_HQ if f else S_OQ
        slot = n % RING
        g = []
        if "w" in want and opt.get("abl_w", 0) and not f:
            pass
        elif "w" in want:
            g.append(([f"s_add_u32 m0, s{S_RING}, {slot * 2048}", f"s_mov_b32 s{S_T0}, {ks * 16384}"],
                      f"buffer_load_dwordx4 v{TWD0}, s[{sw}:{sw+3}], s{S_T0} offen lds", ("w", n)))
            g.append(([], f"buffer_load_dwordx4 v{TWD1}, s[{sw}:{sw+3}], s{S_T0} offen offset:1024 lds", ("w", n)))
        if "b" in want:
            for qs in range(2):
                g.append(([f"s_add_u32 s{S_T1}, s{sq + qs}, {ks * 1024}"],
                          f"buffer_load_dwordx4 {a(AB + slot * 8 + qs * 4, 4)}, v{VL16}, s[{sb}:{sb+3}], s{S_T1} offen{SC1}", ("b", n)))
        return g
    def pf_wo():
        A(f"s_and_b32 s3, s{S_QT}, 3")
        A(f"s_lshl_b32 s3, s3, 18")
        A(f"v_lshlrev_b32 v26, 6, v{VL16}")
        for i in range(4):
            A(f"s_add_u32 s{S_T0}, s3, {i * 65536}")
            vm.issue(f"buffer_load_dword v27, v26, s[{SWO}:{SWO+3}], s{S_T0} offen", ("pf", 0))
    def pf_o():
        A(f"v_lshlrev_b32 v26, 3, v{VL16}")
        A(f"s_lshl_b32 s3, s{S_NB}, 13")
        for qs in range(2):
            A(f"s_add_u32 s{S_T0}, s3, {qs * 262144}")
            vm.issue(f"buffer_load_dword v27, v26, s[{SOB}:{SOB+3}], s{S_T0} offen sc1", ("pf", 0))
    def t_frag(n, cs): return TWF + (n % 3) * 8 + cs * 4
    def t_reads(n):
        slot = n % RING
        out = []
        for cs in range(2):
            for e2 in range(2):
                out.append((f"ds_read_b64_tr_b16 {v(t_frag(n, cs) + 2*e2, 2)}, v{TWR0 + cs} offset:{slot * 2048 + e2 * 1024}", ("tw", n)))
        return out


    def tail2():
        m29 = ms[4]; m30 = mac(30); m31 = mac(31)
        rem = state["dma"]
        batch = [("k", 32)] * 4 + [("v", 31)] * 4
        nis = 8 - len(rem)
        vm.ops = [("w", m) for m in range(4) for _ in range(2)] + [("k", 31)] * 4 + [("v", 30)] * 4 + batch[:nis]
        vm.retired = 8
        state["dma"] = [(pre, ins, batch[nis + i]) for i, (pre, ins, _) in enumerate(rem)]
        state["track"] = True
        state["dpos"] = None
        spin(THP, "hwait", have_first=True)
        for m in range(12): state["dma"] += t2_b(m)
        state["rate"] = opt.get("r29", 130) / 100.0
        def pre30():
            vm.wait([("k", 31), ("v", 30), ("k", 32)])
        def post30():
            w = []
            for m in range(4, 8): w += t2_w(m)
            state["dma"] = w + state["dma"]
            state["rate"] = opt.get("r30", 130) / 100.0
        macro(m29, m30, 29, sync=sync_fn(pre30, 30, issue=False, post=post30))
        def pre31():
            vm.wait([("v", 31)])
            A(ds.waitall())
        def post31():
            for m in range(8, 12): state["dma"] += t2_w(m)
            state["rate"] = opt.get("r31", 150) / 100.0
        macro(m30, m31, 30, sync=sync_fn(pre31, 31, issue=False, post=post31))
        for m in (12, 13): state["dma"] += t2_b(m)
        step(m31[0], m31[1], par=1, sm=True)
        RL, MX = 24, 28
        ef = []
        seen = set()
        for j, (q4, u, g0) in enumerate(EPI):
            first = q4 not in seen; seen.add(q4)
            src = [o_tile(2*u + h, q4) + i for h in range(2) for i in range(4)]
            tmp = NEGM + (j % 2) * 8
            pk = P0 + (j % 4) * 4
            ef.append(("avail", g0))
            if first:
                ef.append(("i", f"v_rcp_f32 v{RL+q4}, v{LACC + 4*q4}", 8))
                ef.append(("i", f"v_cmp_ngt_f32 vcc, 0x4e800000, v{LACC + 4*q4}", 4))
            for i in range(8):
                ef.append(("i", f"v_accvgpr_read_b32 v{tmp+i}, a{src[i]}", 4))
                if first and i == 1: ef.append(("i", "s_or_b64 s[44:45], s[44:45], vcc", 4))
            ef.append(("read", j))
            if first:
                ef.append(("i", f"v_max3_f32 v{MX}, |v{tmp}|, |v{tmp+1}|, |v{tmp+2}|", 4))
                ef.append(("i", f"v_max3_f32 v{MX}, |v{tmp+3}|, |v{tmp+4}|, v{MX}", 4))
                ef.append(("i", f"v_max3_f32 v{MX}, |v{tmp+5}|, |v{tmp+6}|, v{MX}", 4))
                ef.append(("i", f"v_max_f32_e64 v{MX}, |v{tmp+7}|, v{MX}", 4))
                ef.append(("i", f"v_cmp_gt_f32 vcc, 0x0d800000, v{MX}", 4))
            for i in range(8):
                ef.append(("i", f"v_mul_f32 v{tmp+i}, v{tmp+i}, v{RL+q4}", 4))
                if first and i == 1: ef.append(("i", "s_or_b64 s[44:45], s[44:45], vcc", 4))
            for jj in range(4): ef.append(("i", f"v_cvt_pk_bf16_f32 v{pk+jj}, v{tmp+2*jj}, v{tmp+2*jj+1}", 4))
            ef.append(("store", q4, u, pk))
        ef.append(("vote",))
        est = {"read": 0, "g": 0}
        def pop_epi(budget):
            while ef and budget > 0:
                x = ef[0]
                if x[0] == "avail":
                    if est["g"] < x[1]: return
                    ef.pop(0); continue
                ef.pop(0)
                if x[0] == "read": est["read"] = x[1] + 1
                elif x[0] == "i": A(x[1]); budget -= x[2]
                elif x[0] == "store":
                    _, q4, u, pk = x
                    qt, sq = divmod(q4, 2)
                    A(f"s_mov_b32 s{S_T2}, {qt * 262144 + (u // 2) * 4096}")
                    vm.issue(f"buffer_store_dwordx4 {v(pk, 4)}, v{OVO}, s[{SO}:{SO+3}], s{S_T2} offen offset:{(u % 2) * 2048 + sq * 256}{SC1}", ("ost", 0))
                    budget -= 8
                elif x[0] == "vote":
                    A(f"""
                    s_cmp_lg_u64 s[44:45], 0
                    s_cselect_b32 s3, 1, {1 if opt.get("force_fb", 0) else 0}
                    s_andn2_b32 s3, s3, s{S_MODE}
                    v_mov_b32 v29, s3
                    s_lshl_b32 s3, s{S_W}, 2
                    s_add_u32 s3, s3, {VOTE}
                    v_mov_b32 v30, s3
                    v_mov_b32 v25, {VOTE}
                    """)
                    ds.issue("ds_write_b32 v30, v29", ("vote_w", 0))
                    budget -= 36
        def frag(n, cs): return TWF + ((n + 2) % 3) * 8 + cs * 4
        def reads(n):
            sl = n % RING
            base, off = (TWX0, sl * 8192) if sl < 4 else (TWR0, (sl - 4) * 8192)
            return [(f"ds_read_b64_tr_b16 {v(frag(n, cs) + 2*e2, 2)}, v{base + cs} offset:{off + e2 * 1024}", ("tw", n))
                    for cs in range(2) for e2 in range(2)]
        r0 = reads(0)
        def last_filler(g, i, ng):
            est["g"] = g if i >= opt.get("ei", 1) else g - 1
            if g in (1, 2) and r0 and i >= 2:
                t, tag = r0.pop(0); ds.issue(t, tag)
            pop_epi(opt.get("eb1", 24))
        A("s_mov_b64 s[44:45], 0")
        state["filler"] = last_filler
        state["rate"] = opt.get("r31b", 100) / 100.0
        step(m31[1], None, par=0, sm=False)
        state["filler"] = None
        assert not state["pend"] and not r0
        est["g"] = 99
        left = state["dma"]; state["dma"] = []
        state["track"] = False; state["rate"] = None
        for (t, tag) in reads(1): ds.issue(t, tag)
        stamp()
        ldq = []
        if left: ldq.append(dict(need=-1, ready=lambda n: True, ops=left))
        for m in range(12, NK):
            ldq.append(dict(need=m - 2.5, ready=(lambda n, m=m: n >= m - RING), ops=t2_w(m)))
        oready = [False]
        for m in range(14, NK):
            if m < NF: rdy = (lambda n, m=m: est["read"] > m - 14)
            else: rdy = (lambda n, m=m: oready[0] and n >= m - 11)
            ldq.append(dict(need=m, ready=rdy, ops=t2_b(m)))
        ldq.append(dict(need=NK, ready=(lambda n: n >= NK - 11), ops=[
            ([], f"buffer_load_dwordx4 {v(160, 4)}, v{TXA}, s[{SX}:{SX+3}], 0 offen", ("x", 0)),
            ([], f"buffer_load_dwordx4 {v(164, 4)}, v{TXA}, s[{SX}:{SX+3}], 0 offen offset:32", ("x", 0))]))
        ldq.sort(key=lambda d: d["need"])
        cur = []
        def pop_ld(n, k):
            nonlocal cur
            while k > 0:
                if not cur:
                    d = next((d for d in ldq if d["ready"](n)), None)
                    if d is None: return
                    ldq.remove(d); cur = list(d["ops"])
                emit_vm(cur.pop(0)); k -= 1
        def issued(tag): return tag in vm.ops
        def force(n, tags):
            while any(not issued(t) for t in tags) or any(o[2] in tags for o in cur):
                before = len(vm.ops)
                pop_ld(n, 1)
                assert len(vm.ops) > before, (n, tags)
        FB = opt.get("fb2", 18)
        POLL = opt.get("poll", 25)
        FST = [int(x) for x in str(opt.get("fst", "")).split("_") if x]
        def t_step(n):
            f = n < NF
            ks = n if f else n - NF
            accb = ACCF if f else ACCS
            tags = [("b", n)]
            if n + 2 < NK: tags.append(("w", n + 2))
            if n in FST: stamp()
            force(n, tags)
            if n == FB:
                assert not ef, "epilogue must be finished before the publish step"
                tags.append(("ost", 0))
            vm.wait(tags)
            if n == FB:
                x = ds.wait(("vote_w", 0))
                if x: A(x)
                A("s_barrier")
                ds.issue("ds_read_b128 v[28:31], v25", ("vote_r", 0))
            if n == FB + 1:
                x = ds.wait(("vote_r", 0))
                if x: A(x)
                A("""
                v_or3_b32 v28, v28, v29, v30
                v_or_b32 v28, v28, v31
                s_nop 0
                v_readfirstlane_b32 s3, v28
                s_nop 3
                s_cmp_lg_u32 s3, 0
                s_cbranch_scc1 attn_fallback
                """)
                one_lane_atomic(TOWN, guard_mode=False)
                stamp()
            w = ds.wait(("tw", n))
            if w: A(w)
            rd = reads(n + 2) if n + 2 < NK else []
            if f: cap = opt.get("cap1", 1) if ef else opt.get("cap2", 4)
            else: cap = opt.get("cap3", 5)
            done = 0
            i = 0
            for cs in range(2):
                for qs in range(2):
                    d = v(accb + (cs * 2 + qs) * 16, 16)
                    A(mfma(d, v(frag(n, cs), 4), a(t2_bdst(n, qs), 4), "0" if ks == 0 else d))
                    if rd:
                        t, tag = rd.pop(0); ds.issue(t, tag)
                    if n == POLL and i == 0:
                        vm.issue(f"global_load_dword v{TPOLL}, v{TOP}, s[{S_DBG}:{S_DBG+1}] sc1", ("poll", 0))
                    want = -(-(i + 1) * cap // 4) - done
                    if want > 0:
                        b = len(vm.ops); pop_ld(n, want); done += len(vm.ops) - b
                    if ef: pop_epi(opt.get("eb2", 28))
                    i += 1
            assert not rd
        for n in range(NF): t_step(n)
        stamp()
        vm.wait([("poll", 0)])
        spin(TOP, "owait", have_first=True, first=TPOLL)
        oready[0] = True
        stamp()
        pop_ld(NF, opt.get("b0", 4))
        A.nop(4)
        for j in (1, 2, 3):
            for q in range(4):
                ds.issue(f"ds_write_b128 v{TFW + j - 1}, {v(ACCF + 16*j + 4*q, 4)} offset:{q * 1024}", ("fw", 0))
                pop_ld(NF, 1)
        A(ds.waitall())
        A("s_barrier")
        for j in range(3):
            for q in range(4):
                ds.issue(f"ds_read_b128 {v(160 + 16*j + 4*q, 4)}, v{TFR} offset:{j * 4096 + q * 1024}", ("fr", j))
                pop_ld(NF, 1)
        pop_ld(NF, 100)
        A(ds.wait(("fr", 0)))
        for i in range(16): A(f"v_add_f32 v{ACCF+i}, v{ACCF+i}, v{160+i}")
        A(ds.wait(("fr", 2)))
        for i in range(16): A(f"v_add_f32 v{176+i}, v{176+i}, v{192+i}")
        for i in range(16): A(f"v_add_f32 v{ACCF+i}, v{ACCF+i}, v{176+i}")
        for i in range(16): A(f"v_mul_f32 v{160+i}, s{S_NLOG2E}, v{ACCF+i}")
        for i in range(16): A(f"v_exp_f32 v{160+i}, v{160+i}")
        for i in range(16): A(f"v_add_f32 v{160+i}, 1.0, v{160+i}")
        for i in range(16): A(f"v_rcp_f32 v{160+i}, v{160+i}")
        for i in range(16): A(f"v_mul_f32 v{ACCF+i}, v{ACCF+i}, v{160+i}")
        for n in range(NF, NK): t_step(n)
        assert not ldq and not cur
        stamp()
        A.nop(12)
        def sx(j, q): return (j * 2 + q // 2) * 8192 + (q % 2) * 1024
        for j in (1, 2, 3):
            for q in range(4):
                ds.issue(f"ds_write_b128 v{TSW}, {v(ACCS + 16*j + 4*q, 4)} offset:{sx(j - 1, q)}", ("sw", 0))
        A(ds.waitall())
        A("s_barrier")
        for j in range(3):
            for q in range(4):
                ds.issue(f"ds_read_b128 {v(112 + 16*j + 4*q, 4)}, v{TSR + j} offset:{sx(j, q)}", ("sr", j))
        vm.wait([("x", 0)])
        for i in range(8):
            A(f"v_lshlrev_b32 v{168+2*i}, 16, v{160+i}")
            A(f"v_and_b32 v{169+2*i}, 0xffff0000, v{160+i}")
        A(ds.wait(("sr", 0)))
        for i in range(16): A(f"v_add_f32 v{ACCS+i}, v{ACCS+i}, v{112+i}")
        A(ds.wait(("sr", 2)))
        for i in range(16): A(f"v_add_f32 v{128+i}, v{128+i}, v{144+i}")
        for i in range(16): A(f"v_add_f32 v{ACCS+i}, v{ACCS+i}, v{128+i}")
        for i in range(16): A(f"v_fmac_f32 v{168+i}, v{ACCS+i}, v{ACCF+i}")
        for i in range(8): A(f"v_cvt_pk_bf16_f32 v{112+i}, v{168+2*i}, v{169+2*i}")
        A(f"buffer_store_dwordx4 {v(112, 4)}, v{TXA}, s[{SOUT}:{SOUT+3}], 0 offen")
        A(f"buffer_store_dwordx4 {v(116, 4)}, v{TXA}, s[{SOUT}:{SOUT+3}], 0 offen offset:32")

    def tail_old():
        m29 = ms[4]; m30 = mac(30); m31 = mac(31)
        def post30():
            A(f"global_load_dword v24, v{THP}, s[{S_DBG}:{S_DBG+1}] sc1")
        macro(m29, m30, 29, sync=sync_fn(8, 30, issue=False, post=post30))
        def post31():
            spin(THP, "hwait", have_first=True)
            vm.ops = []; vm.retired = 0
            state["track"] = True
            assert not state["dma"]
            state["dpos"] = None
            for n in range(DEPTH): state["dma"] += t_loads(n)
        def pre31():
            A("s_waitcnt vmcnt(0)")
            A(ds.waitall())
        macro(m30, m31, 30, sync=sync_fn(pre31, 31, issue=False, post=post31), dma_every=False)
        step(m31[0], m31[1], par=1, sm=True)
        step(m31[1], None, par=0, sm=False)
        assert not state["pend"]
        while state["dma"]: emit_vm(state["dma"].pop(0))
        state["track"] = False
        stamp()
        if M16:
            A.nop(8)
            A(f"""
            v_mov_b32 v30, 0x4e800000                 ; 2^30
            v_cmp_nlt_f32 vcc, v{LACC}, v30
            v_cmp_nlt_f32 s[44:45], v{LACC+4}, v30
            v_rcp_f32 v20, v{LACC}
            v_rcp_f32 v21, v{LACC+4}
            s_or_b64 s[44:45], vcc, s[44:45]
            v_cmp_nlt_f32 vcc, v{LACC+8}, v30
            v_rcp_f32 v22, v{LACC+8}
            v_rcp_f32 v23, v{LACC+12}
            v_mov_b32 v24, 0
            s_or_b64 s[44:45], vcc, s[44:45]
            v_cmp_nlt_f32 vcc, v{LACC+12}, v30
            v_mov_b32 v25, 0
            v_mov_b32 v26, 0
            v_mov_b32 v27, 0
            s_or_b64 s[44:45], vcc, s[44:45]
            v_and_b32 v28, 0xf0, v{VL16}
            v_and_b32 v29, 0x300, v{VL16}
            v_lshl_add_u32 v28, v29, 1, v28            ; (l%16)*16 + (g&1)*512 + (g>>1)*1024
            """)
            nst = 0
            for q4 in range(4):
                qt, sq = divmod(q4, 2)
                for u in range(4):
                    src = [AO + ((2*u + h)*4 + q4)*4 + i for h in range(2) for i in range(4)]
                    tmp = NEGM + (nst % 4) * 8
                    pk = P0 + (nst % 4) * 4
                    nst += 1
                    for i in range(8): A(f"v_accvgpr_read_b32 v{tmp+i}, a{src[i]}")
                    for i in range(0, 8, 2): A(f"v_max3_f32 v{24+q4}, |v{tmp+i}|, |v{tmp+i+1}|, v{24+q4}")
                    for i in range(8): A(f"v_mul_f32 v{tmp+i}, v{tmp+i}, v{20+q4}")
                    for j in range(4): A(f"v_cvt_pk_bf16_f32 v{pk+j}, v{tmp+2*j}, v{tmp+2*j+1}")
                    A(f"s_mov_b32 s3, {qt * 262144 + (u // 2) * 4096}")
                    vm.issue(f"buffer_store_dwordx4 {v(pk, 4)}, v28, s[{SO}:{SO+3}], s3 offen offset:{(u % 2) * 2048 + sq * 256}{SC1}", ("ost", 0))
            A("v_min_f32 v24, v24, v25")
            A("v_min_f32 v26, v26, v27")
            A("v_min_f32 v26, v26, v24")
        else:
            for (l, t) in ((LA, 21), (LB, 23)):
                A(f"v_mov_b32 v{t}, v{l}")
            A.nop(2)
            for (l, t) in ((LA, 21), (LB, 23)):
                A(f"v_permlane32_swap_b32 v{l}, v{t}")
            A.nop(1)
            for (l, t) in ((LA, 21), (LB, 23)):
                A(f"v_add_f32 v{l}, v{l}, v{t}")
            A(f"""
            v_mov_b32 v1, 0x4e800000                 ; 2^30
            v_cmp_nlt_f32 vcc, v{LA}, v1
            v_cmp_nlt_f32 s[44:45], v{LB}, v1
            v_rcp_f32 v{LA}, v{LA}
            v_rcp_f32 v{LB}, v{LB}
            s_or_b64 s[44:45], vcc, s[44:45]
            v_mov_b32 v26, 0
            v_mov_b32 v27, 0
            """)
            nst = 0
            for qt in range(2):
                l = LA if qt == 0 else LB
                for dt in range(4):
                    for tp in range(2):
                        src = AO + qt*64 + dt*16 + tp*8
                        tmp = NEGM + (nst % 4) * 8
                        pk = P0 + (nst % 4) * 4
                        nst += 1
                        for i in range(8): A(f"v_accvgpr_read_b32 v{tmp+i}, a{src+i}")
                        for i in range(0, 8, 2): A(f"v_max3_f32 v{26+qt}, |v{tmp+i}|, |v{tmp+i+1}|, v{26+qt}")
                        for i in range(8): A(f"v_mul_f32 v{tmp+i}, v{tmp+i}, v{l}")
                        for j in range(4): A(f"v_cvt_pk_bf16_f32 v{pk+j}, v{tmp+2*j}, v{tmp+2*j+1}")
                        k = 2*dt + tp
                        so = qt * 262144 + (k // 4) * 4096
                        A(f"s_mov_b32 s3, {so}")
                        vm.issue(f"buffer_store_dwordx4 {v(pk, 4)}, v{VL16}, s[{SO}:{SO+3}], s3 offen offset:{(k % 4) * 1024}{SC1}", ("ost", 0))
            A("v_min_f32 v26, v26, v27")
        A(f"""
        v_mov_b32 v30, 0x0d800000                ; 2^-100
        v_cmp_lt_f32 vcc, v26, v30
        s_nop 1
        s_or_b64 vcc, vcc, s[44:45]
        s_cmp_lg_u64 vcc, 0
        s_cselect_b32 s3, 1, {1 if opt.get("force_fb", 0) else 0}
        s_andn2_b32 s3, s3, s{S_MODE}
        v_mov_b32 v24, s3
        v_mov_b32 v25, s{S_W}
        v_lshlrev_b32 v25, 2, v25
        v_add_u32 v25, {LDS_VOTE}, v25
        """)
        ds.issue("ds_write_b32 v25, v24", ("vote_w", 0))
        A(f"v_mov_b32 v25, {LDS_VOTE}")
        stamp()
        if opt.get("pfw", 0) == 1: pf_wo()
        vm.wait([("w", 1)])
        for n in (0, 1):
            for (t, tag) in t_reads(n): ds.issue(t, tag)
        FB = opt.get("fb", 9)
        def t_step(n):
            f = n < NF
            ks = n if f else n - NF
            accb = ACCF if f else ACCS
            tags = [("b", n)]
            if n in [int(x) for x in str(opt.get("fst", "")).split("_") if x]: stamp()
            if n + 2 < NK: tags.append(("w", n + 2))
            if n == FB: tags.append(("ost", 0))
            vm.wait(tags)
            if n == FB:
                x = ds.wait(("vote_w", 0))
                if x: A(x)
                A("s_barrier")
                ds.issue("ds_read_b128 v[28:31], v25", ("vote_r", 0))
            if n == FB + 1:
                x = ds.wait(("vote_r", 0))
                if x: A(x)
                A("""
                v_or3_b32 v28, v28, v29, v30
                v_or_b32 v28, v28, v31
                s_nop 0
                v_readfirstlane_b32 s3, v28
                s_nop 3
                s_cmp_lg_u32 s3, 0
                s_cbranch_scc1 attn_fallback
                """)
                one_lane_atomic(TOWN, guard_mode=False)
            w = ds.wait(("tw", n))
            if w: A(w)
            rd = t_reads(n + 2) if n + 2 < NK else []
            m = n + DEPTH
            if m >= NK: ld = []
            elif f and m >= NF: ld = t_loads(m, "w")
            else: ld = t_loads(m)
            if m == NK:
                ld = [([], f"buffer_load_dwordx4 {v(160, 4)}, v{TXA}, s[{SX}:{SX+3}], 0 offen", ("x", 0)),
                      ([], f"buffer_load_dwordx4 {v(164, 4)}, v{TXA}, s[{SX}:{SX+3}], 0 offen offset:32", ("x", 0))]
            for cs in range(2):
                for qs in range(2):
                    d = v(accb + (cs * 2 + qs) * 16, 16)
                    if opt.get("h16t", 0):
                        b0 = accb + (cs * 2 + qs) * 16 + 8 * (ks % 2)
                        for hh in range(2):
                            dd = v(b0 + 4*hh, 4)
                            A(f"v_mfma_f32_16x16x32_bf16 {dd}, {v(t_frag(n, cs), 4)}, {a(AB + (n % RING) * 8 + qs * 4, 4)}, {'0' if ks < 2 else dd}")
                    else:
                        A(mfma(d, v(t_frag(n, cs), 4), a(AB + (n % RING) * 8 + qs * 4, 4), "0" if ks == 0 else d))
                    if rd:
                        t, tag = rd.pop(0); ds.issue(t, tag)
                    if ld: emit_vm(ld.pop(0))
            assert not ld and not rd
        for n in range(NF): t_step(n)
        stamp()
        A.nop(12)
        for j in (1, 2, 3):
            for q in range(4):
                ds.issue(f"ds_write_b128 v{TFW + j - 1}, {v(ACCF + 16*j + 4*q, 4)} offset:{q * 1024}", ("fw", 0))
        A(ds.waitall())
        A(f"s_cmp_lg_u32 s{S_W}, 0")
        A("s_cbranch_scc1 owait_ok")
        spin(TOP, "owait", have_first=False)
        A("s_barrier")
        stamp()
        if opt.get("pfo", 0) == 1: pf_o()
        for n in range(NF, NF + DEPTH):
            for g in t_loads(n, "b"): emit_vm(g)
        if opt.get("pfo", 0) == 2: pf_o()
        for j in range(3):
            for q in range(4):
                ds.issue(f"ds_read_b128 {v(160 + 16*j + 4*q, 4)}, v{TFR} offset:{j * 4096 + q * 1024}", ("fr", j))
        A(ds.wait(("fr", 0)))
        for i in range(16): A(f"v_add_f32 v{ACCF+i}, v{ACCF+i}, v{160+i}")
        A(ds.wait(("fr", 2)))
        for i in range(16): A(f"v_add_f32 v{176+i}, v{176+i}, v{192+i}")
        for i in range(16): A(f"v_add_f32 v{ACCF+i}, v{ACCF+i}, v{176+i}")
        for i in range(16): A(f"v_mul_f32 v{160+i}, s{S_NLOG2E}, v{ACCF+i}")
        for i in range(16): A(f"v_exp_f32 v{160+i}, v{160+i}")
        for i in range(16): A(f"v_add_f32 v{160+i}, 1.0, v{160+i}")
        for i in range(16): A(f"v_rcp_f32 v{160+i}, v{160+i}")
        for i in range(16): A(f"v_mul_f32 v{ACCF+i}, v{ACCF+i}, v{160+i}")
        for n in range(NF, NK): t_step(n)
        stamp()
        A.nop(12)
        for j in (1, 2, 3):
            for q in range(4):
                ds.issue(f"ds_write_b128 v{TSW}, {v(ACCS + 16*j + 4*q, 4)} offset:{(j - 1) * 4096 + q * 1024}", ("sw", 0))
        A(ds.waitall())
        A("s_barrier")
        for j in range(3):
            for q in range(4):
                ds.issue(f"ds_read_b128 {v(112 + 16*j + 4*q, 4)}, v{TSR + j} offset:{q * 1024}", ("sr", j))
        vm.wait([("x", 0)])
        for i in range(8):
            A(f"v_lshlrev_b32 v{168+2*i}, 16, v{160+i}")
            A(f"v_and_b32 v{169+2*i}, 0xffff0000, v{160+i}")
        A(ds.wait(("sr", 0)))
        for i in range(16): A(f"v_add_f32 v{ACCS+i}, v{ACCS+i}, v{112+i}")
        A(ds.wait(("sr", 2)))
        for i in range(16): A(f"v_add_f32 v{128+i}, v{128+i}, v{144+i}")
        for i in range(16): A(f"v_add_f32 v{ACCS+i}, v{ACCS+i}, v{128+i}")
        for i in range(16): A(f"v_fmac_f32 v{168+i}, v{ACCS+i}, v{ACCF+i}")
        for i in range(8): A(f"v_cvt_pk_bf16_f32 v{112+i}, v{168+2*i}, v{169+2*i}")
        A(f"buffer_store_dwordx4 {v(112, 4)}, v{TXA}, s[{SOUT}:{SOUT+3}], 0 offen")
        A(f"buffer_store_dwordx4 {v(116, 4)}, v{TXA}, s[{SOUT}:{SOUT+3}], 0 offen offset:32")
    if TL2: tail2()
    else: tail_old()
    if prof:
        stamp()
        A("s_waitcnt vmcnt(0)")
        stamp()
        if prof == 2:
            A("v_writelane_b32 v0, s96, 0")
            A("v_writelane_b32 v0, s97, 1")
            A(f"s_cmp_lg_u32 s{S_W}, 0")
            A("s_cbranch_scc1 prof_skip")
            A("s_mov_b64 exec, 1")
            A("v_mov_b32 v2, s60")
            A("s_not_b32 s3, s97")
            A("v_mov_b32 v3, s3")
            A("v_mov_b32 v4, 0")
            A(f"global_atomic_umax v4, v2, s[{S_DBG}:{S_DBG+1}] offset:56")
            A(f"global_atomic_umax v4, v3, s[{S_DBG}:{S_DBG+1}] offset:60")
            A("s_mov_b64 exec, -1")
            A("s_cmp_lg_u32 s2, 0")
            A("s_cbranch_scc1 prof_skip")
            for i in range(nstamp[0]):
                A(f"v_readlane_b32 s3, v0, {2*i+1}")
                A("s_nop 3")
                A("s_sub_u32 s3, s3, s97")
                A(f"v_writelane_b32 v2, s3, {i}")
            A(f"v_lshrrev_b32 v1, 2, v{VL16}")
            A(f"s_mov_b64 exec, {(1 << nstamp[0]) - 1}")
            A(f"global_store_dword v1, v2, s[{S_DBG}:{S_DBG+1}]")
            A("s_mov_b64 exec, -1")
            A.label("prof_skip")
        A(f"s_lshl_b32 s3, s2, 2")
        A(f"s_add_u32 s3, s3, s{S_W}")
        A(f"s_lshl_b32 s3, s3, 8")
        A(f"s_add_u32 s3, s3, {PROF_OFF}")
        A("s_add_u32 s56, s56, s3")
        A("s_addc_u32 s57, s57, 0")
        A("v_writelane_b32 v0, s96, 0")
        A("v_writelane_b32 v0, s97, 1")
        A(f"v_lshrrev_b32 v1, 2, v{VL16}")
        A("global_store_dword v1, v0, s[56:57]")
        print("stamps", nstamp[0])
    A("s_endpgm")
    A.label("attn_fallback")
    A(f"""
    s_waitcnt vmcnt(0) lgkmcnt(0)
    s_mov_b32 s{S_MODE}, 1
    v_mov_b32 v24, 0xff800000
    v_mov_b32 v25, 0xff800000
    v_mov_b32 v26, 0xff800000
    v_mov_b32 v27, 0xff800000
    s_mov_b32 s{S_KOFF}, 0
    """)
    A.label("attn_fb_loop")
    A("s_barrier")
    for grp in kv_dma("k", 0, S_KOFF):
        pre, ins, tag = grp
        for pp in pre: A(pp)
        if pre: A.nop(1)
        A(ins)
    A("s_waitcnt vmcnt(0)")
    A("s_barrier")
    if M16:
        for sub in range(2):
            for t in range(8):
                kt, T = divmod(t, 4)
                A(kread(0, sub, t, t % 4))
                A("s_waitcnt lgkmcnt(0)")
                for q4 in range(4):
                    d = v(S0 + (kt*4 + q4)*4, 4)
                    A(mfma16(d, a(AK + 4*(t % 4), 4), v(q16(q4, T), 4), "0" if T == 0 else d))
            A.nop(10)
            for q4 in range(4):
                r = [S0 + (kt*4 + q4)*4 + i for kt in range(2) for i in range(4)]
                for i in range(0, 8, 2):
                    A(f"v_max3_f32 v{24+q4}, v{24+q4}, v{r[i]}, v{r[i+1]}")
            A.nop(4)
    else:
        for sub in range(2):
            for t in range(8):
                A(kread(0, sub, t, t % 4))
                A("s_waitcnt lgkmcnt(0)")
                for qt in range(2):
                    d = v(S0 + qt*16, 16)
                    A(mfma(d, a(AK + 4*(t % 4), 4), v(QF + qt*32 + t*4, 4), "0" if t == 0 else d))
            A.nop(14)
            for qt in range(2):
                b = S0 + qt*16; m = 24 + qt
                for i in range(0, 16, 2):
                    A(f"v_max3_f32 v{m}, v{m}, v{b+i}, v{b+i+1}")
            A.nop(2)
    A(f"""
    s_add_u32 s{S_KOFF}, s{S_KOFF}, 16384
    s_cmp_lt_u32 s{S_KOFF}, 0x80000
    s_cbranch_scc1 attn_fb_loop
    """)
    if M16:
        xlane_max16()
        for q4 in range(4):
            for i in range(4):
                A(f"v_sub_f32 v{NEGM + q4*4 + i}, 0, v{24+q4}")
    else:
        for qt in range(2):
            A(f"v_mov_b32 v{26+qt}, v{24+qt}")
        A.nop(2)
        for qt in range(2):
            A(f"v_permlane32_swap_b32 v{24+qt}, v{26+qt}")
        A.nop(1)
        for qt in range(2):
            A(f"v_max_f32 v{24+qt}, v{24+qt}, v{26+qt}")
        for qt in range(2):
            for i in range(16):
                A(f"v_sub_f32 v{NEGM + qt*16 + i}, 0, v{24+qt}")
    A("s_barrier")
    for grp in kv_dma("v", 0) + kv_dma("v", 1) + kv_dma("k", 0) + kv_dma("k", 1) + kv_dma("k", 2):
        pre, ins, tag = grp
        for pp in pre: A(pp)
        if pre: A.nop(1)
        A(ins)
    A("s_waitcnt vmcnt(0)")
    A("s_branch attn_go")
    A.label("main_done")
    A("s_endpgm")
    check_hazards(A.L, "f")
    for (ls, le) in loops:
        body = A.L[ls:le]
        check_hazards(body + body, "floop")
    return (L, 256, 256, 163840, A.text(), 512, 256)
```
